```python
import torch

def _softmax(x, axis=-1):
    return torch.softmax(x, dim=axis)
def _gelu(x):
    return torch.nn.functional.gelu(x, approximate="tanh")
def _silu(x):
    return torch.nn.functional.silu(x)
def _sigmoid(x):
    return torch.sigmoid(x)
def _layernorm(x, axis=-1, eps=1e-5):
    m = x.mean(dim=axis, keepdim=True)
    v = x.var(dim=axis, keepdim=True, unbiased=False)
    return (x - m) / torch.sqrt(v + eps)
def _scatter_add(tgt, idx, src, axis=0):
    return tgt.clone().index_add_(axis, idx, src)
def _segment_sum(src, seg, n):
    out = torch.zeros((n,) + src.shape[1:], dtype=src.dtype)
    return out.index_add_(0, seg, src)
def _pad(x, pw):
    flat = tuple(v for pair in reversed(pw) for v in pair)
    return torch.nn.functional.pad(x, flat)

kernel_name = 'parallel_sum__grouped_kv_mqa__mixer_token_mlp__prompt'

def setup_inputs():

    _w = (lambda a: (lambda t: t.to(torch.bfloat16) if t.is_floating_point() else t)(torch.as_tensor(a)))
    def _A_setup():
        B, S, D, H = 1, 2048, 640, 32
        Dh = D // H
        return {
            "x": _w((lambda *s: torch.randn(*s, dtype=torch.bfloat16) * 0.05)(B, S, D)),
            "wq": _w((lambda *s: torch.randn(*s, dtype=torch.bfloat16) * 0.05)(D, H * Dh)),
            "wk": _w((lambda *s: torch.randn(*s, dtype=torch.bfloat16) * 0.05)(D, Dh)),
            "wv": _w((lambda *s: torch.randn(*s, dtype=torch.bfloat16) * 0.05)(D, Dh)),
            "wo": _w((lambda *s: torch.randn(*s, dtype=torch.bfloat16) * 0.05)(H * Dh, D)),
        }
    _A_in = _A_setup()

    def _B_setup():
        B, S, D, F = 1, 2048, 640, 1536
        return {
            "x": _w((lambda *s: torch.randn(*s, dtype=torch.bfloat16) * 0.05)(B, S, D)),
            "w1": _w((lambda *s: torch.randn(*s, dtype=torch.bfloat16) * 1.6)(S, F) * (S ** -0.5)),
            "b1": _w((lambda *s: torch.randn(*s, dtype=torch.bfloat16) * 12.8)(F) * 0.02),
            "w2": _w((lambda *s: torch.randn(*s, dtype=torch.bfloat16) * 0.8)(F, S) * (F ** -0.5)),
            "b2": _w((lambda *s: torch.randn(*s, dtype=torch.bfloat16) * 12.8)(S) * 0.02),
        }
    _B_in = _B_setup()

    return {
        "A_x": _A_in["x"],
        "A_wq": _A_in["wq"],
        "A_wk": _A_in["wk"],
        "A_wv": _A_in["wv"],
        "A_wo": _A_in["wo"],
        "B_x": _B_in["x"],
        "B_w1": _B_in["w1"],
        "B_b1": _B_in["b1"],
        "B_w2": _B_in["w2"],
        "B_b2": _B_in["b2"],
    }

def reference(A_x, A_wq, A_wk, A_wv, A_wo, B_x, B_w1, B_b1, B_w2, B_b2):
    def _A_ref(x, wq, wk, wv, wo):
        B, S, D = x.shape
        H = 32
        Dh = D // H
        q = (lambda x, *d: x.permute(*d))((x @ wq).reshape(B, S, H, Dh), 0, 2, 1, 3)
        k = x @ wk
        v = x @ wv
        scores = torch.einsum("bhqd,bkd->bhqk", q, k) * (Dh ** -0.5)
        p = _softmax(scores, axis=-1)
        o = torch.einsum("bhqk,bkd->bhqd", p, v)
        return (lambda x, *d: x.permute(*d))(o, 0, 2, 1, 3).reshape(B, S, H * Dh) @ wo

    def _B_ref(x, w1, b1, w2, b2):
        B, S, D = x.shape
        h = _layernorm(x, axis=-1)
        u = torch.einsum("bsd,sf->bdf", h, w1) + b1
        u = _gelu(u)
        y = torch.einsum("bdf,fs->bds", u, w2) + b2
        return (lambda x, *d: x.permute(*d))(y, 0, 2, 1)

    x = A_x
    xn = _layernorm(x, axis=-1)
    return x + _A_ref(xn, A_wq, A_wk, A_wv, A_wo) + _B_ref(xn, B_w1, B_b1, B_w2, B_b2)
```

```python
class Gen:
    def __init__(self):
        self.L = []
    def __call__(self, s):
        for ln in s.split("\n"):
            ln = ln.strip()
            if ln:
                self.L.append("    " + ln)
    def label(self, n):
        self.L.append(n + ":")
    def raw(self, s):
        self.L.append(s)
    def c(self, s):
        self.L.append("    ; " + s)
    def nop(self, n):
        while n > 0:
            k = min(n, 16)
            self.L.append("    s_nop %d" % (k - 1))
            n -= k
    def text(self):
        return "\n".join(self.L) + "\n"

def V(i, n=1):
    return "v%d" % i if n == 1 else "v[%d:%d]" % (i, i + n - 1)
def S(i, n=1):
    return "s%d" % i if n == 1 else "s[%d:%d]" % (i, i + n - 1)
def A(i, n=1):
    return "a%d" % i if n == 1 else "a[%d:%d]" % (i, i + n - 1)

class Alloc:
    def __init__(self, start, limit, kind="v"):
        self.p = start; self.limit = limit; self.kind = kind; self.names = {}
    def __call__(self, n=1, align=1, name=None):
        if n >= 2 and align == 1:
            align = 2
        if n >= 4 and self.kind == "s":
            align = max(align, 4)
        self.p = (self.p + align - 1) // align * align
        r = self.p
        self.p += n
        assert self.p <= self.limit, "out of %s regs (%d > %d) at %s" % (self.kind, self.p, self.limit, name)
        if name: self.names[name] = (r, n)
        return r

def kernel_header(name):
    return (".text\n.globl %s\n.p2align 8\n.type %s,@function\n%s:\n" % (name, name, name))

def kernel_desc(name, nvgpr, nsgpr=102, accum=None, nagpr=0):
    if accum is None:
        accum = (nvgpr + 3) // 4 * 4
    total = accum + nagpr if nagpr else nvgpr
    return f""".section .rodata,"a"
.p2align 6
.amdhsa_kernel {name}
  .amdhsa_next_free_vgpr {total}
  .amdhsa_next_free_sgpr {nsgpr}
  .amdhsa_accum_offset {accum}
  .amdhsa_group_segment_fixed_size 0
  .amdhsa_kernarg_size 104
  .amdhsa_user_sgpr_count 2
  .amdhsa_user_sgpr_kernarg_segment_ptr 1
  .amdhsa_system_sgpr_workgroup_id_x 1
  .amdhsa_float_denorm_mode_32 3
.end_amdhsa_kernel
"""

def srd(g, dst, base_lo, base_hi, nbytes):
    g(f"s_mov_b32 s{dst}, s{base_lo}")
    g(f"s_and_b32 s{dst+1}, s{base_hi}, 0xffff")
    g(f"s_mov_b32 s{dst+2}, 0x{nbytes:x}")
    g(f"s_mov_b32 s{dst+3}, 0x20000")

class Stamps:
    def __init__(self, g, sbase, n):
        self.g = g; self.sb = sbase; self.n = n; self.k = 0; self.names = []
    def stamp(self, name, real=False):
        assert self.k < self.n
        r = self.sb + 2*self.k
        self.g(f"s_memtime s[{r}:{r+1}]" if not real else f"s_memrealtime s[{r}:{r+1}]")
        self.names.append(name); self.k += 1
    def dump(self, sWS, s_slot_off, vtmp, vtmp2):
        g = self.g
        g("s_waitcnt lgkmcnt(0)")
        g("s_mov_b64 exec, 1")
        g(f"v_mov_b32 v{vtmp2}, 0")
        for i in range(self.k):
            g(f"v_mov_b32 v{vtmp}, s{self.sb+2*i}")
            g(f"buffer_store_dword v{vtmp}, v{vtmp2}, s[{sWS}:{sWS+3}], s{s_slot_off} offen offset:{4*i}")
        g("s_mov_b64 exec, -1")
```

```python
from asm import *
from layout import *
from prep import wg_map, f32

CHUNK = 16 * KV_TILE
LDS_KVBUF = 0
LDS_OA = 83968
LDS_CNT = LDS_OA + 10240
LDS_ATT_END = LDS_CNT + 64
CNT_READY = 0; CNT_FREE = 4; CNT_OAS = 8
TBOUND2 = 3600.0

class Common:
    pass

def spin_ge(g, vcnt_addr, off, vtmp, stmp, starget, tag, have_read=False):
    if have_read:
        g(f"v_readfirstlane_b32 s{stmp}, v{vtmp}")
        g(f"s_cmp_ge_u32 s{stmp}, {starget}")
        g(f"s_cbranch_scc1 L_{tag}_ok")
    g.label(f"L_{tag}_spin")
    g(f"ds_read_b32 v{vtmp}, v{vcnt_addr} offset:{off}")
    g("s_waitcnt lgkmcnt(0)")
    g(f"v_readfirstlane_b32 s{stmp}, v{vtmp}")
    g(f"s_cmp_ge_u32 s{stmp}, {starget}")
    g(f"s_cbranch_scc0 L_{tag}_spin")
    g.label(f"L_{tag}_ok")

def lds_signal(g, vcnt_addr, vone, off):
    g("s_mov_b64 exec, 1")
    g(f"ds_add_u32 v{vcnt_addr}, v{vone} offset:{off}")
    g("s_mov_b64 exec, -1")

def gen_attn(g, C, sc1_out=True, st=None, exp_nohooks=False, exp_nodma=False):
    va = Alloc(C.vfree, 256, "v"); sa = Alloc(C.sfree, 100, "s")
    sI, sJ, sW, sWS = C.sI, C.sJ, C.sW, C.sWS
    QloA = va(4,4); QhiA = va(4,4); QloB = va(4,4); QhiB = va(4,4)
    KB = [(va(4,4), va(4,4)) for _ in range(2)]
    VB = [va(8,4) for _ in range(2)]
    SA = va(16,4); SB = va(16,4); PA = va(8,4); PB = va(8,4); OA = va(16,4); OB = va(16,4)
    vKlo = [va(), va()]; vKhi = [va(), va()]; vV = [va(), va()]
    vL16 = va(); vCnt = va(); vOne = va(); vT0 = va(); vT1 = va(); vT2 = va(); vT3 = va(); vC = va()
    vKm = va(2,2)
    sT0 = sa(); sT1 = sa(); sT2 = sa(); sIt = sa(); sTgt = sa(); sQ = sa(); sDm = sa()
    g.c("==== attention waves")
    g(f"v_lshlrev_b32 v{vL16}, 4, v0")
    g(f"s_lshl_b32 s{sQ}, s{sI}, 3")
    g(f"s_add_u32 s{sQ}, s{sQ}, s{sJ}")
    g(f"s_mul_i32 s{sQ}, s{sQ}, {QF_WG}")
    g(f"s_mul_i32 s{sT0}, s{sW}, 2560")
    g(f"s_add_u32 s{sQ}, s{sQ}, s{sT0}")
    g(f"s_add_u32 s{sQ}, s{sQ}, {WS_QF}")
    for r in range(4):
        g(f"v_mov_b32 v{QhiA+r}, 0")
        g(f"v_mov_b32 v{QhiB+r}, 0")
    g(f"v_lshlrev_b32 v{vT0}, 3, v0")
    g(f"buffer_load_dwordx4 {V(QloA,4)}, v{vL16}, {S(sWS,4)}, s{sQ} offen")
    g(f"buffer_load_dwordx4 {V(QloB,4)}, v{vL16}, {S(sWS,4)}, s{sQ} offen offset:1280")
    g("s_mov_b32 exec_hi, 0")
    g(f"buffer_load_dwordx2 {V(QhiA,2)}, v{vT0}, {S(sWS,4)}, s{sQ} offen offset:1024")
    g(f"buffer_load_dwordx2 {V(QhiB,2)}, v{vT0}, {S(sWS,4)}, s{sQ} offen offset:2304")
    g("s_mov_b32 exec_hi, -1")
    g(f"s_mov_b32 s{sT1}, {WS_KMAX}")
    g(f"buffer_load_dwordx2 {V(vKm,2)}, v{vT0}, {S(sWS,4)}, s{sT1} offen")
    def dma_chunk(c_expr_s, buf):
        g(f"s_lshl_b32 s{sT0}, s{sW}, 10")
        g(f"s_add_u32 s{sT1}, s{c_expr_s}, s{sT0}")
        for nn in range(10):
            g(f"s_add_u32 m0, s{sT0}, {LDS_KVBUF + buf*CHUNK + nn*4096}")
            if nn: g(f"s_add_u32 s{sT1}, s{sT1}, 4096")
            else: g("s_nop 0")
            g(f"buffer_load_dwordx4 v{vL16}, {S(sWS,4)}, s{sT1} offen lds")
        tag = f"dma{len(g.L)}"
        g(f"s_cmp_lg_u32 s{sW}, 0")
        g(f"s_cbranch_scc1 L_{tag}")
        g(f"s_mov_b32 m0, {LDS_KVBUF + buf*CHUNK + 40*1024}")
        g(f"s_add_u32 s{sT1}, s{sT1}, 4096")
        g(f"buffer_load_dwordx4 v{vL16}, {S(sWS,4)}, s{sT1} offen lds")
        g.label(f"L_{tag}")
    g(f"s_mov_b32 s{sDm}, {WS_KV}")
    dma_chunk(sDm, 0)
    g(f"s_mov_b32 s{sDm}, {WS_KV + CHUNK}")
    dma_chunk(sDm, 1)
    g(f"v_and_b32 v{vT0}, 31, v0")
    g(f"v_mov_b32 v{vKlo[0]}, v{vL16}")
    g(f"v_lshlrev_b32 v{vKhi[0]}, 3, v{vT0}")
    g(f"v_add_u32 v{vKhi[0]}, {KV_KHI}, v{vKhi[0]}")
    g(f"v_lshrrev_b32 v{vT1}, 3, v{vT0}")
    g(f"v_and_b32 v{vT2}, 3, v{vT0}")
    g(f"v_lshl_add_u32 v{vT1}, v{vT1}, 2, v{vT2}")
    g(f"v_bfe_u32 v{vT2}, v{vT0}, 2, 1")
    g(f"v_mul_u32_u24 v{vT2}, 10, v{vT2}")
    g(f"v_add_u32 v{vT2}, v{vT2}, v{vT1}")
    g(f"v_add_u32 v{vT3}, 7, v{vT2}")
    g(f"v_cmp_gt_u32 vcc, 4, v{vT2}")
    g.nop(2)
    g(f"v_cndmask_b32 v{vT3}, v{vT3}, v{vT2}, vcc")
    g(f"v_subrev_u32 v{vC}, 10, v{vT2}")
    g(f"v_cmp_le_u32 vcc, 14, v{vT2}")
    g.nop(2)
    g(f"v_cndmask_b32 v{vT3}, v{vT3}, v{vC}, vcc")
    g(f"v_cmp_le_u32 vcc, 10, v{vT1}")
    g(f"v_mov_b32 v{vC}, {ONES_SLOT}")
    g.nop(1)
    g(f"v_cndmask_b32 v{vT3}, v{vT3}, v{vC}, vcc")
    g(f"v_lshrrev_b32 v{vT2}, 5, v0")
    g(f"v_mul_u32_u24 v{vT2}, 336, v{vT2}")
    g(f"v_lshl_add_u32 v{vV[0]}, v{vT3}, 4, v{vT2}")
    g(f"v_add_u32 v{vV[0]}, {KV_V}, v{vV[0]}")
    for r in (vKlo, vKhi, vV):
        g(f"v_add_u32 v{r[1]}, {CHUNK}, v{r[0]}")
    g(f"v_mov_b32 v{vCnt}, {LDS_CNT}")
    g(f"v_mov_b32 v{vOne}, 1")
    for p in range(2):
        g(f"v_mov_b32 v{KB[p][1]+2}, 0x3f803f80")
        g(f"v_mov_b32 v{KB[p][1]+3}, 0x00003f80")
    for r in range(16):
        g(f"v_mov_b32 v{OA+r}, 0")
        g(f"v_mov_b32 v{OB+r}, 0")
    for r in range(8):
        g(f"v_mov_b32 v{PB+r}, 0")
        g(f"v_mov_b32 v{VB[1]+r}, 0")
    g(f"v_mov_b32 v{vT0}, 0")
    g(f"s_cmp_lg_u32 s{sW}, 0")
    g("s_cbranch_scc1 L_att_nz")
    g(f"v_lshlrev_b32 v{vT1}, 2, v0")
    g(f"v_add_u32 v{vT1}, {LDS_CNT}, v{vT1}")
    g("s_mov_b64 exec, 0xffff")
    g(f"ds_write_b32 v{vT1}, v{vT0}")
    g("s_mov_b64 exec, -1")
    g.label("L_att_nz")
    g("s_waitcnt vmcnt(20)")
    g(f"v_max_f32 v{vKm}, v{vKm}, v{vKm+1}")
    for rot in (8, 4, 2, 1):
        g.nop(2)
        g(f"v_max_f32_dpp v{vKm}, v{vKm}, v{vKm} row_ror:{rot} row_mask:0xf bank_mask:0xf")
    def xred(reg, op, which=(16, 32)):
        for wdt in which:
            g(f"v_mov_b32 v{vT0}, v{reg}")
            g.nop(2)
            g(f"v_permlane{wdt}_swap_b32 v{reg}, v{vT0}")
            g.nop(1)
            g(f"{op} v{reg}, v{reg}, v{vT0}")
    xred(vKm, "v_max_f32")
    for (lo, hi, dst) in ((QloA, QhiA, vT1), (QloB, QhiB, vT2)):
        g(f"v_mov_b32 v{dst}, 0")
        for r in range(4):
            g(f"v_dot2c_f32_bf16 v{dst}, v{lo+r}, v{lo+r}")
        for r in range(2):
            g(f"v_dot2c_f32_bf16 v{dst}, v{hi+r}, v{hi+r}")
        g.nop(3)
        xred(dst, "v_add_f32", (32,))
    g(f"v_max_f32 v{vT1}, v{vT1}, v{vT2}")
    g(f"v_mul_f32 v{vT1}, v{vT1}, v{vKm}")
    g(f"v_mov_b32 v{vT2}, {f32(TBOUND2)}")
    g(f"v_cmp_nle_f32 vcc, v{vT1}, v{vT2}")
    g.nop(5)
    g("s_cbranch_vccz L_att_fast")
    g.c("slow path: exact row max")
    vMA = vT1; vMB = vT2
    g(f"v_mov_b32 v{vMA}, 0xff800000")
    g(f"v_mov_b32 v{vMB}, 0xff800000")
    g(f"v_and_b32 v{vT3}, 31, v0")
    g(f"v_lshlrev_b32 v{vT3}, 3, v{vT3}")
    g(f"s_mov_b32 s{sT2}, {WS_KV}")
    g(f"s_mov_b32 s{sIt}, 64")
    g.label("L_att_smax")
    g(f"buffer_load_dwordx4 {V(KB[0][0],4)}, v{vL16}, {S(sWS,4)}, s{sT2} offen")
    g(f"buffer_load_dwordx2 {V(KB[0][1],2)}, v{vT3}, {S(sWS,4)}, s{sT2} offen offset:{KV_KHI}")
    g("s_waitcnt vmcnt(0)")
    g(f"v_mfma_f32_32x32x16_bf16 {V(SA,16)}, {V(KB[0][0],4)}, {V(QloA,4)}, 0")
    g(f"v_mfma_f32_32x32x16_bf16 {V(SB,16)}, {V(KB[0][0],4)}, {V(QloB,4)}, 0")
    g(f"v_mfma_f32_32x32x16_bf16 {V(SA,16)}, {V(KB[0][1],4)}, {V(QhiA,4)}, {V(SA,16)}")
    g(f"v_mfma_f32_32x32x16_bf16 {V(SB,16)}, {V(KB[0][1],4)}, {V(QhiB,4)}, {V(SB,16)}")
    g.nop(16)
    for r in range(0, 16, 2):
        g(f"v_max3_f32 v{vMA}, v{SA+r}, v{SA+r+1}, v{vMA}")
        g(f"v_max3_f32 v{vMB}, v{SB+r}, v{SB+r+1}, v{vMB}")
    g(f"s_add_u32 s{sT2}, s{sT2}, {KV_TILE}")
    g(f"s_sub_u32 s{sIt}, s{sIt}, 1")
    g(f"s_cmp_lg_u32 s{sIt}, 0")
    g("s_cbranch_scc1 L_att_smax")
    for (m, hi) in ((vMA, QhiA), (vMB, QhiB)):
        xred(m, "v_max_f32", (32,))
        g(f"v_xor_b32 v{m}, 0x80000000, v{m}")
        g(f"v_and_b32 v{vT3}, 0xffff0000, v{m}")
        g(f"v_sub_f32 v{m}, v{m}, v{vT3}")
        g(f"v_and_b32 v{vC}, 0xffff0000, v{m}")
        g(f"v_sub_f32 v{m}, v{m}, v{vC}")
        g(f"v_lshrrev_b32 v{vT3}, 16, v{vT3}")
        g(f"v_or_b32 v{vT3}, v{vT3}, v{vC}")
        g(f"v_lshrrev_b32 v{m}, 16, v{m}")
        g("s_mov_b32 exec_hi, 0")
        g(f"v_mov_b32 v{hi+2}, v{vT3}")
        g(f"v_mov_b32 v{hi+3}, v{m}")
        g("s_mov_b32 exec_hi, -1")
    g.label("L_att_fast")
    g("s_waitcnt vmcnt(10) lgkmcnt(0)")
    if st: st.stamp("prebar")
    g("s_barrier")
    if st: st.stamp("postbar"); st.stamp("rpostbar", real=True)
    def rd_k(t):
        b = (t // 16) % 2; tt = t % 16; p = t % 2
        g(f"ds_read_b128 {V(KB[p][0],4)}, v{vKlo[b]} offset:{tt*KV_TILE}")
        g(f"ds_read_b64 {V(KB[p][1],2)}, v{vKhi[b]} offset:{tt*KV_TILE}")
    def rd_v(t):
        b = (t // 16) % 2; tt = t % 16; p = t % 2
        g(f"ds_read_b128 {V(VB[p],4)}, v{vV[b]} offset:{tt*KV_TILE}")
        g(f"ds_read_b128 {V(VB[p]+4,4)}, v{vV[b]} offset:{tt*KV_TILE+672}")
    def qk(Sr, Qlo, Qhi, p):
        return [f"v_mfma_f32_32x32x16_bf16 {V(Sr,16)}, {V(KB[p][0],4)}, {V(Qlo,4)}, 0",
                f"v_mfma_f32_32x32x16_bf16 {V(Sr,16)}, {V(KB[p][1],4)}, {V(Qhi,4)}, {V(Sr,16)}"]
    def pv(O, P, p):
        return [f"v_mfma_f32_32x32x16_bf16 {V(O,16)}, {V(VB[p],4)}, {V(P,4)}, {V(O,16)}",
                f"v_mfma_f32_32x32x16_bf16 {V(O,16)}, {V(VB[p]+4,4)}, {V(P+4,4)}, {V(O,16)}"]
    def ex(Sr, P):
        e = [f"v_exp_f32 v{Sr+r}, v{Sr+r}" for r in range(16)]
        c = [f"v_cvt_pk_bf16_f32 v{P+k}, v{Sr+2*k}, v{Sr+2*k+1}" for k in range(8)]
        seq = [e[0], e[1]]
        for k in range(7):
            seq += [e[2*k+2], c[k], e[2*k+3]]
        return seq, c[7]
    def phase(valu, pend, mf):
        out = []
        if pend: out.append(pend)
        out.append(mf[0])
        out += valu[0:5]; out.append(mf[1])
        out += valu[5:11]; out.append(mf[2])
        out += valu[11:17]; out.append(mf[3])
        out += valu[17:]
        for x in out: g(x)
    rd_k(0)
    g("s_waitcnt lgkmcnt(0)")
    for x in qk(SA, QloA, QhiA, 0): g(x)
    g.nop(12)
    g(f"s_mov_b32 s{sIt}, 0")
    g.raw(".p2align 6")
    g.label("L_att_loop")
    pend = None
    for t in range(32):
        p = t % 2
        if (t == 1 or t == 17) and not exp_nohooks:
            want_iter = 1 if t == 1 else 0
            tag = f"fr{t}"
            g(f"s_cmp_lg_u32 s{sIt}, {want_iter}")
            g(f"s_cbranch_scc1 L_{tag}_skip")
            spin_ge(g, vCnt, CNT_FREE, vC, sT2, 8 if t == 1 else 4, tag)
            g(f"s_mov_b32 s{sDm}, {WS_KV + (3 if t == 1 else 2)*CHUNK}")
            if not exp_nodma: dma_chunk(sDm, 1 if t == 1 else 0)
            g.label(f"L_{tag}_skip")
        if (t == 9 or t == 26) and not exp_nohooks:
            tag = f"rs{t}"
            if t == 26:
                g(f"s_cmp_lg_u32 s{sIt}, 0")
                g(f"s_cbranch_scc1 L_{tag}_skip")
            g("s_waitcnt vmcnt(0)")
            lds_signal(g, vCnt, vOne, CNT_READY)
            g.label(f"L_{tag}_skip")
        if (t == 15 or t == 31) and not exp_nohooks:
            tag = f"rd{t}"
            if t == 31:
                g(f"s_cmp_lg_u32 s{sIt}, 0")
                g(f"s_cbranch_scc1 L_{tag}_skip")
                spin_ge(g, vCnt, CNT_READY, vC, sT2, 8, tag)
            else:
                g(f"s_lshl_b32 s{sTgt}, s{sIt}, 3")
                g(f"s_add_u32 s{sTgt}, s{sTgt}, 4")
                spin_ge(g, vCnt, CNT_READY, vC, sT2, f"s{sTgt}", tag)
            g.label(f"L_{tag}_skip")
        rd_k((t+1) % 32)
        rd_v(t)
        va_, lastA = ex(SA, PA)
        mf = qk(SB, QloB, QhiB, p) + pv(OB, PB, 1-p)
        phase(va_, pend, mf)
        pend = lastA
        g("s_waitcnt lgkmcnt(0)")
        if (t == 15 or t == 31) and not exp_nohooks:
            tag = f"fs{t}"
            if t == 31:
                g(f"s_cmp_lg_u32 s{sIt}, 0")
                g(f"s_cbranch_scc1 L_{tag}_skip")
            lds_signal(g, vCnt, vOne, CNT_FREE)
            g.label(f"L_{tag}_skip")
        vb_, lastB = ex(SB, PB)
        mf = qk(SA, QloA, QhiA, 1-p) + pv(OA, PA, p)
        phase(vb_, pend, mf)
        pend = lastB
        if t == 31:
            g(f"s_add_u32 s{sIt}, s{sIt}, 1")
            g(pend); pend = None
    if st:
        g(f"s_cmp_eq_u32 s{sIt}, 1")
        g("s_cbranch_scc0 L_att_nostamp")
        st.stamp("iter0"); st.stamp("riter0", real=True)
        g.label("L_att_nostamp")
    g(f"s_cmp_lt_u32 s{sIt}, 2")
    g("s_cbranch_scc1 L_att_loop")
    if st: st.stamp("loopend"); st.stamp("rloopend", real=True)
    g.nop(1)
    for x in pv(OB, PB, 1): g(x)
    vAd = [va() for _ in range(5)]
    g(f"v_and_b32 v{vT0}, 31, v0")
    g(f"v_lshrrev_b32 v{vT1}, 5, v0")
    g(f"s_mul_i32 s{sT0}, s{sW}, 20")
    g(f"v_mul_u32_u24 v{vT1}, 10, v{vT1}")
    g(f"v_add_u32 v{vT1}, s{sT0}, v{vT1}")
    for u in range(5):
        g(f"v_add_u32 v{vT2}, {2*u}, v{vT1}")
        g(f"v_lshrrev_b32 v{vT3}, 3, v{vT2}")
        g(f"v_lshlrev_b32 v{vT3}, 9, v{vT3}")
        g(f"v_lshl_add_u32 v{vT3}, v{vT0}, 4, v{vT3}")
        g(f"v_and_b32 v{vT2}, 7, v{vT2}")
        g(f"v_lshl_add_u32 v{vAd[u]}, v{vT2}, 1, v{vT3}")
        g(f"v_add_u32 v{vAd[u]}, {LDS_OA}, v{vAd[u]}")
    g.nop(8)
    for ss, O in ((0, OA), (1, OB)):
        g(f"v_rcp_f32 v{vT2}, v{O+10}")
        g.nop(1)
        for r in range(10):
            g(f"v_mul_f32 v{O+r}, v{O+r}, v{vT2}")
        for u in range(5):
            g(f"v_cvt_pk_bf16_f32 v{O+u}, v{O+2*u}, v{O+2*u+1}")
        for u in range(5):
            g(f"ds_write_b32 v{vAd[u]}, v{O+u} offset:{ss*5120}")
    g("s_waitcnt lgkmcnt(0)")
    lds_signal(g, vCnt, vOne, CNT_OAS)
    spin_ge(g, vCnt, CNT_OAS, vC, sT2, 4, "oas")
    g(f"s_mul_i32 s{sQ}, s{sI}, 80")
    g(f"s_mul_i32 s{sT0}, s{sJ}, 5")
    g(f"s_add_u32 s{sQ}, s{sQ}, s{sT0}")
    g(f"s_lshl_b32 s{sQ}, s{sQ}, 10")
    g(f"s_add_u32 s{sQ}, s{sQ}, {WS_OF}")
    sc = " sc1" if sc1_out else ""
    for nn in range(3):
        if nn == 2:
            g(f"s_cmp_ge_u32 s{sW}, 2")
            g("s_cbranch_scc1 L_att_stdone")
        g(f"s_add_u32 s{sT0}, s{sW}, {4*nn}")
        g(f"s_lshl_b32 s{sT1}, s{sT0}, 10")
        g(f"v_add_u32 v{vT0}, s{sT1}, v{vL16}")
        g(f"v_add_u32 v{vT0}, {LDS_OA}, v{vT0}")
        g(f"ds_read_b128 {V(SA+4*nn,4)}, v{vT0}")
        g(f"s_cmp_ge_u32 s{sT0}, 5")
        g(f"s_cselect_b32 s{sT2}, {40960-5120}, 0")
        g(f"s_add_u32 s{sT1}, s{sT1}, s{sT2}")
        g(f"s_add_u32 s{sT1}, s{sT1}, s{sQ}")
        g("s_waitcnt lgkmcnt(0)")
        g(f"buffer_store_dwordx4 {V(SA+4*nn,4)}, v{vL16}, {S(sWS,4)}, s{sT1} offen{sc}")
    g.label("L_att_stdone")
    if st:
        st.stamp("end"); st.stamp("rend", real=True)
        g(f"s_lshl_b32 s{sT0}, s2, 3")
        g(f"s_add_u32 s{sT0}, s{sT0}, s{sW}")
        g(f"s_lshl_b32 s{sT0}, s{sT0}, 7")
        g(f"s_add_u32 s{sT0}, s{sT0}, {WS_DBG}")
        st.dump(sWS, sT0, vT0, vT1)
    return va.p

def gen_main_attn_only(name="main_kernel", stamps=False, **kw):
    g = Gen(); C = Common()
    st = Stamps(g, 60, 16) if stamps else None
    sa = Alloc(4, 100, "s")
    C.sWS = sa(4); sP = sa(2); C.sI = sa(); C.sJ = sa(); C.sW = sa(); sT = sa()
    C.sfree = sa.p; C.vfree = 2
    g.raw(kernel_header(name))
    g("s_cmp_ge_u32 s2, 256")
    g("s_cbranch_scc1 L_main_end")
    if st: st.stamp("rstart", real=True); st.stamp("start")
    g(f"s_load_dwordx2 {S(sP,2)}, s[0:1], {KA_WS}")
    g(f"v_lshrrev_b32 v1, 6, v0")
    g(f"v_and_b32 v0, 63, v0")
    g(f"v_readfirstlane_b32 s{C.sW}, v1")
    wg_map(g, C.sI, C.sJ, sT)
    g("s_waitcnt lgkmcnt(0)")
    srd(g, C.sWS, sP, sP+1, WS_SIZE)
    nv = gen_attn(g, C, st=st, **kw)
    C.st = st
    g.label("L_main_end")
    g("s_endpgm")
    gen_main_attn_only.st = st
    return g.text(), kernel_desc(name, nv), LDS_ATT_END, nv

if __name__ == "__main__":
    t, d, lds, nv = gen_main_attn_only()
    print("lds", lds, "vgprs", nv, "lines", t.count("\n"))
```

```python
import sys, os
sys.path.insert(0, os.path.dirname(os.path.abspath(__file__)))
from layout import *
NAME = "parallel_sum__grouped_kv_mqa__mixer_token_mlp__prompt"
HEADER = """; Kernarg layout for this problem (104 bytes, ptrs only, base s[0:1]):
"""
def build(kernels, path):
    out = HEADER
    for (label, grid, block, lds, text, desc) in kernels:
        out += f"; @launch kernel={label} grid=({grid},1,1) block=({block},1,1) lds={lds}\n"
    out += '.amdgcn_target "amdgcn-amd-amdhsa--gfx950"\n'
    seen = set()
    for (label, grid, block, lds, text, desc) in kernels:
        if label in seen: continue
        seen.add(label)
        out += text
    seen = set()
    for (label, grid, block, lds, text, desc) in kernels:
        if label in seen: continue
        seen.add(label)
        out += desc
    open(path, "w").write(out)
    return out

if __name__ == "__main__":
    from prep import gen_prep
    t, d, lds, nv = gen_prep()
    ks = [("prep_kernel", 256, 256, lds, t, d)]
    build(ks, sys.argv[1] if len(sys.argv) > 1 else "out.s")
```

```python
from asm import *
from layout import *
from prep import f32
from attn import spin_ge, lds_signal
import math

RING = 16384

class GW:
    pass

def tr_addr_128(g, vdst0, vdst1, mode, vt0, vt1, vt2, s_ringbase):
    g(f"v_bfe_u32 v{vt0}, v0, 2, 2")
    g(f"v_lshrrev_b32 v{vt1}, 5, v0")
    g(f"v_lshlrev_b32 v{vt1}, {3 if mode=='nat' else 2}, v{vt1}")
    g(f"v_add_u32 v{vt1}, v{vt1}, v{vt0}")
    g(f"v_lshlrev_b32 v{vdst0}, 7, v{vt1}")
    g(f"v_bfe_u32 v{vt1}, v0, 4, 1")
    g(f"v_bfe_u32 v{vt2}, v0, 1, 1")
    g(f"v_lshl_add_u32 v{vt1}, v{vt1}, 1, v{vt2}")
    g(f"v_lshrrev_b32 v{vt0}, 1, v{vt0}")
    g(f"v_lshlrev_b32 v{vt0}, 2, v{vt0}")
    g(f"v_xor_b32 v{vt1}, v{vt1}, v{vt0}")
    g(f"v_lshl_add_u32 v{vdst0}, v{vt1}, 4, v{vdst0}")
    g(f"v_and_b32 v{vt2}, 1, v0")
    g(f"v_lshl_add_u32 v{vdst0}, v{vt2}, 3, v{vdst0}")
    g(f"v_add_u32 v{vdst0}, s{s_ringbase}, v{vdst0}")
    g(f"v_xor_b32 v{vdst1}, 64, v{vdst0}")

def dma_voff_128(g, vdst, pitch, vt0, vt1):
    g(f"v_lshrrev_b32 v{vt0}, 3, v0")
    g(f"v_bfe_u32 v{vt1}, v0, 4, 1")
    g(f"v_lshlrev_b32 v{vt1}, 2, v{vt1}")
    g(f"v_and_b32 v{vdst}, 7, v0")
    g(f"v_xor_b32 v{vdst}, v{vdst}, v{vt1}")
    g(f"v_lshlrev_b32 v{vdst}, 4, v{vdst}")
    g(f"v_mul_u32_u24 v{vt0}, {pitch}, v{vt0}")
    g(f"v_add_u32 v{vdst}, v{vdst}, v{vt0}")

def stream_gemm(g, tag, nsteps, depth, pitch, sT_srd, sTso, vTsrc, sRing, vTr, TB, mode,
                sD_srd, sDso, vDsrc, DR, nd, acc, tr_is_A, sc1="", sCnt=None, prologue=True, first_zero=True, nt=""):
    nv = 2 + nd
    toff = 512 if mode == "nat" else 1024
    def issue(slot):
        g(f"s_add_u32 m0, s{sRing}, {slot*2048}")
        g("s_nop 0")
        g(f"buffer_load_dwordx4 v{vTsrc}, {S(sT_srd,4)}, s{sTso} offen{nt} lds")
        g(f"s_add_u32 m0, s{sRing}, {slot*2048+1024}")
        g(f"s_add_u32 s{sTso}, s{sTso}, {8*pitch}")
        g(f"buffer_load_dwordx4 v{vTsrc}, {S(sT_srd,4)}, s{sTso} offen{nt} lds")
        g(f"s_add_u32 s{sTso}, s{sTso}, {8*pitch}")
        for b in range(nd):
            g(f"buffer_load_dwordx4 {V(DR+(slot*nd+b)*4,4)}, v{vDsrc[b]}, {S(sD_srd,4)}, s{sDso} offen{sc1}")
        g(f"s_add_u32 s{sDso}, s{sDso}, 1024")
    def trread(slot, buf):
        for a in range(2):
            for t in range(2):
                g(f"ds_read_b64_tr_b16 {V(TB[buf]+4*a+2*t,2)}, v{vTr[a]} offset:{slot*2048 + t*toff}")
    def mfmas(slot, buf, zero):
        for a in range(2):
            for b in range(nd):
                T = V(TB[buf]+4*a,4); Dd = V(DR+(slot*nd+b)*4,4); c = acc(a,b)
                A_, B_ = (T, Dd) if tr_is_A else (Dd, T)
                g(f"v_mfma_f32_32x32x16_bf16 {V(c,16)}, {A_}, {B_}, {'0' if zero else V(c,16)}")
    assert nsteps % depth == 0 and depth % 2 == 0
    if prologue:
        for s in range(depth): issue(s)
    C_pro = None
    nit = nsteps // depth
    g(f"s_waitcnt vmcnt({nv*(depth-1)})")
    trread(0, 0)
    def body(last, first):
        for s in range(depth):
            nxt = (s+1) % depth
            if not (last and s == depth-1):
                if last: out_after = nv*(depth-2-s)
                else:    out_after = nv*(depth-2)
                g(f"s_waitcnt vmcnt({out_after})")
                trread(nxt, (s+1) % 2)
                g("s_waitcnt lgkmcnt(4)")
            else:
                g("s_waitcnt lgkmcnt(0)")
            mfmas(s, s % 2, first and first_zero and s == 0)
            if not last: issue(s)
    if nit == 1:
        body(True, True)
    else:
        if first_zero:
            body(False, True); rem = nit - 2
        else:
            rem = nit - 1
        if rem > 0:
            g(f"s_mov_b32 s{sCnt}, {rem}")
            g.label(f"L_{tag}_loop")
            body(False, False)
            g(f"s_sub_u32 s{sCnt}, s{sCnt}, 1")
            g(f"s_cmp_lg_u32 s{sCnt}, 0")
            g(f"s_cbranch_scc1 L_{tag}_loop")
        body(True, False)

def gelu16(g, acc, vb, vt, sC1, sC2):
    for r0 in range(0, 16, 4):
        rs = range(r0, r0+4)
        for r in rs: g(f"v_add_f32 v{acc+r}, v{acc+r}, v{vb+r}")
        for r in rs: g(f"v_mul_f32 v{vt+r-r0}, v{acc+r}, v{acc+r}")
        for r in rs: g(f"v_fma_f32 v{vt+r-r0}, v{vt+r-r0}, s{sC2}, v{vb+16}")
        for r in rs: g(f"v_mul_f32 v{vt+r-r0}, v{vt+r-r0}, v{acc+r}")
        for r in rs: g(f"v_exp_f32 v{vt+r-r0}, v{vt+r-r0}")
        for r in rs: g(f"v_add_f32 v{vt+r-r0}, 1.0, v{vt+r-r0}")
        for r in rs: g(f"v_rcp_f32 v{vt+r-r0}, v{vt+r-r0}")
        for r in rs: g(f"v_mul_f32 v{acc+r}, v{acc+r}, v{vt+r-r0}")

CNT_M1A = 12; CNT_M1B = 16; CNT_FA = 20; CNT_FB = 24

def gen_m1(g, C, lds_ring0, lds_cnt, sc1_out=True, barrier=True, st=None, nt=""):
    va = Alloc(C.vfree, 256, "v"); sa = Alloc(C.sfree, 100, "s")
    sW1 = sa(4); sB1 = sa(4); sP = sa(4); sG = sa(); sRing = sa(); sTso = sa(); sDso = sa(); sCnt = sa()
    sFa = sa(); sDb = sa(); sT0 = sa(); sT1 = sa(); sT2 = sa(); sC1 = sa(); sC2 = sa()
    sWS = C.sWS
    g.c("==== M1 (gemm waves)")
    g(f"s_load_dwordx4 {S(sP,4)}, s[0:1], {KA_W1}")
    g(f"s_sub_u32 s{sG}, s{C.sW}, 4")
    g(f"s_mul_i32 s{sRing}, s{sG}, {RING}")
    g(f"s_add_u32 s{sRing}, s{sRing}, {lds_ring0}")
    g(f"s_lshr_b32 s{sT0}, s2, 3")
    g(f"s_mul_i32 s{sT1}, s{sT0}, 43")
    g(f"s_lshr_b32 s{sT1}, s{sT1}, 8")
    g(f"s_mul_i32 s{sT2}, s{sT1}, 6")
    g(f"s_sub_u32 s{sT2}, s{sT0}, s{sT2}")
    g(f"s_and_b32 s{sFa}, s2, 3")
    g(f"s_mul_i32 s{sFa}, s{sFa}, 6")
    g(f"s_add_u32 s{sFa}, s{sFa}, s{sT2}")
    g(f"s_bfe_u32 s{sDb}, s2, 0x10002")
    g(f"s_mul_i32 s{sDb}, s{sDb}, 5")
    g(f"s_add_u32 s{sDb}, s{sDb}, s{sT1}")
    vTsrc = va(); vTr = [va(), va()]; vDsrc = [va(), va()]; vt = va(4, 4); vCnt = va(); vOne = va(); vL16 = va()
    TB = [va(8,4), va(8,4)]
    DEPTH = 8
    DR = va(DEPTH*8, 4)
    ACC = va(64, 4)
    vB = va(17, 4); vBr = va(8, 2)
    acc = lambda a, b: ACC + (2*a+b)*16
    dma_voff_128(g, vTsrc, F*2, vt, vt+1)
    tr_addr_128(g, vTr[0], vTr[1], "nat", vt, vt+1, vt+2, sRing)
    g(f"v_lshlrev_b32 v{vL16}, 4, v0")
    g(f"v_mov_b32 v{vDsrc[0]}, v{vL16}")
    g(f"v_add_u32 v{vDsrc[1]}, {128*1024}, v{vL16}")
    g(f"v_mov_b32 v{vCnt}, {lds_cnt}")
    g(f"v_mov_b32 v{vOne}, 1")
    g(f"s_mul_i32 s{sTso}, s{sG}, {512*F*2}")
    g(f"s_lshl_b32 s{sT1}, s{sFa}, 7")
    g(f"s_add_u32 s{sTso}, s{sTso}, s{sT1}")
    g(f"s_lshl_b32 s{sDso}, s{sDb}, 18")
    g(f"s_lshl_b32 s{sT1}, s{sG}, 15")
    g(f"s_add_u32 s{sDso}, s{sDso}, s{sT1}")
    g(f"s_add_u32 s{sDso}, s{sDso}, {WS_HF}")
    g("s_waitcnt lgkmcnt(0)")
    srd(g, sW1, sP, sP+1, S_TOK*F*2)
    srd(g, sB1, sP+2, sP+3, F*2)
    g(f"s_cmp_ge_u32 s{sT0}, 30")
    g("s_cbranch_scc1 L_m1_idle")
    g(f"v_lshrrev_b32 v{vt}, 5, v0")
    g(f"v_lshlrev_b32 v{vt}, 3, v{vt}")
    g(f"s_lshr_b32 s{sT1}, s{sG}, 1")
    g(f"s_lshl_b32 s{sT1}, s{sT1}, 6")
    g(f"s_lshl_b32 s{sT2}, s{sFa}, 7")
    g(f"s_add_u32 s{sT1}, s{sT1}, s{sT2}")
    for q in range(4):
        g(f"buffer_load_dwordx2 {V(vBr+2*q,2)}, v{vt}, {S(sB1,4)}, s{sT1} offen offset:{16*q}")
    C.m1_prologue_done = True
    nv = 4
    def issue_hook(): pass
    def issue(slot):
        g(f"s_add_u32 m0, s{sRing}, {slot*2048}")
        g("s_nop 0")
        g(f"buffer_load_dwordx4 v{vTsrc}, {S(sW1,4)}, s{sTso} offen{nt} lds")
        g(f"s_add_u32 m0, s{sRing}, {slot*2048+1024}")
        g(f"s_add_u32 s{sTso}, s{sTso}, {8*F*2}")
        g(f"buffer_load_dwordx4 v{vTsrc}, {S(sW1,4)}, s{sTso} offen{nt} lds")
        g(f"s_add_u32 s{sTso}, s{sTso}, {8*F*2}")
        for b in range(2):
            g(f"buffer_load_dwordx4 {V(DR+(slot*2+b)*4,4)}, v{vDsrc[b]}, {S(sWS,4)}, s{sDso} offen")
        g(f"s_add_u32 s{sDso}, s{sDso}, 1024")
    for s in range(DEPTH): issue(s)
    if barrier: g("s_barrier")
    if st: st.stamp("m1_start")
    stream_gemm(g, "m1", 32, DEPTH, F*2, sW1, sTso, vTsrc, sRing, vTr, TB, "nat",
                sWS, sDso, vDsrc, DR, 2, acc, True, sCnt=sCnt, prologue=False, nt=nt)
    if st: st.stamp("m1_kend")
    for q in range(4):
        for k in range(2):
            g(f"v_lshlrev_b32 v{vB+4*q+2*k}, 16, v{vBr+2*q+k}")
            g(f"v_and_b32 v{vB+4*q+2*k+1}, 0xffff0000, v{vBr+2*q+k}")
    g(f"v_add_u32 v{vt}, s{sRing}, v{vL16}")
    g.nop(12)
    for tt in range(4):
        g(f"s_cmp_eq_u32 s{sG}, {tt}")
        g(f"s_cbranch_scc1 L_m1_w{tt}")
        g(f"s_sub_u32 s{sT1}, {tt+3}, s{sG}")
        g(f"s_and_b32 s{sT1}, s{sT1}, 3")
        g(f"s_lshl_b32 s{sT1}, s{sT1}, 12")
        g(f"v_add_u32 v{vt+1}, s{sT1}, v{vt}")
        for q in range(4):
            g(f"ds_write_b128 v{vt+1}, {V(ACC+16*tt+4*q,4)} offset:{q*1024}")
        g.label(f"L_m1_w{tt}")
    g("s_waitcnt lgkmcnt(0)")
    lds_signal(g, vCnt, vOne, CNT_M1A)
    for tt in range(1, 4):
        g(f"s_cmp_lg_u32 s{sG}, {tt}")
        g(f"s_cbranch_scc1 L_m1_mv{tt}")
        for r in range(16): g(f"v_mov_b32 v{ACC+r}, v{ACC+16*tt+r}")
        g.label(f"L_m1_mv{tt}")
    spin_ge(g, vCnt, CNT_M1A, vt+2, sT2, 4, "m1a")
    for k in range(1, 4):
        g(f"s_add_u32 s{sT1}, s{sG}, {k}")
        g(f"s_and_b32 s{sT1}, s{sT1}, 3")
        g(f"s_mul_i32 s{sT2}, s{sT1}, {RING}")
        g(f"s_add_u32 s{sT2}, s{sT2}, {lds_ring0 + ((-k-1+4) & 3)*4096}")
        g(f"v_add_u32 v{vt+1}, s{sT2}, v{vL16}")
        for q in range(4):
            g(f"ds_read_b128 {V(ACC+16*k+4*q,4)}, v{vt+1} offset:{q*1024}")
    g("s_waitcnt lgkmcnt(0)")
    lds_signal(g, vCnt, vOne, CNT_M1B)
    for r in range(16):
        g(f"v_add_f32 v{ACC+r}, v{ACC+r}, v{ACC+16+r}")
        g(f"v_add_f32 v{ACC+32+r}, v{ACC+32+r}, v{ACC+48+r}")
    for r in range(16):
        g(f"v_add_f32 v{ACC+r}, v{ACC+r}, v{ACC+32+r}")
    c1 = -2.0*math.sqrt(2/math.pi)*1.4426950408889634
    g(f"v_mov_b32 v{vB+16}, {f32(c1)}")
    g(f"s_mov_b32 s{sC2}, {f32(c1*0.044715)}")
    gelu16(g, ACC, vB, vt, sC1, sC2)
    for k in range(8):
        g(f"v_cvt_pk_bf16_f32 v{ACC+16+k}, v{ACC+2*k}, v{ACC+2*k+1}")
    g(f"s_and_b32 s{sT1}, s{sG}, 1")
    g(f"s_lshl_b32 s{sT1}, s{sT1}, 1")
    g(f"s_lshl_b32 s{sT2}, s{sDb}, 2")
    g(f"s_add_u32 s{sT1}, s{sT1}, s{sT2}")
    g(f"v_bfe_u32 v{vt}, v0, 4, 1")
    g(f"v_add_u32 v{vt}, s{sT1}, v{vt}")
    g(f"v_mul_u32_u24 v{vt+1}, 52, v{vt}")
    g(f"v_lshrrev_b32 v{vt+1}, 8, v{vt+1}")
    g(f"v_mul_u32_u24 v{vt+2}, 5, v{vt+1}")
    g(f"v_sub_u32 v{vt}, v{vt}, v{vt+2}")
    g(f"v_mul_u32_u24 v{vt+1}, 3, v{vt+1}")
    g(f"v_lshrrev_b32 v{vt+2}, 1, v{vt}")
    g(f"v_add_u32 v{vt+1}, v{vt+1}, v{vt+2}")
    g(f"v_mul_u32_u24 v{vt+1}, {96*1024}, v{vt+1}")
    g(f"v_and_b32 v{vt}, 1, v{vt}")
    g(f"v_lshlrev_b32 v{vt}, 4, v{vt}")
    g(f"v_and_b32 v{vt+2}, 15, v0")
    g(f"v_add_u32 v{vt}, v{vt}, v{vt+2}")
    g(f"v_and_b32 v{vt+2}, 32, v0")
    g(f"v_add_u32 v{vt}, v{vt}, v{vt+2}")
    g(f"v_lshl_add_u32 v{vt}, v{vt}, 4, v{vt+1}")
    g(f"s_lshr_b32 s{sT1}, s{sG}, 1")
    g(f"s_lshl_b32 s{sT1}, s{sT1}, 1")
    g(f"s_lshl_b32 s{sT2}, s{sFa}, 2")
    g(f"s_add_u32 s{sT1}, s{sT1}, s{sT2}")
    g(f"s_lshl_b32 s{sT1}, s{sT1}, 10")
    g(f"s_add_u32 s{sT1}, s{sT1}, {WS_GF}")
    sc = " sc1" if sc1_out else ""
    g(f"buffer_store_dwordx4 {V(ACC+16,4)}, v{vt}, {S(sWS,4)}, s{sT1} offen{sc}")
    g(f"buffer_store_dwordx4 {V(ACC+20,4)}, v{vt}, {S(sWS,4)}, s{sT1} offen offset:1024{sc}")
    if st: st.stamp("m1_end")
    g("s_branch L_m1_done")
    g.label("L_m1_idle")
    if barrier: g("s_barrier")
    g.label("L_m1_done")
    C.m1 = dict(sG=sG, sT0=sT0)
    return va.p

def gen_m2wo(g, C, lds_ring0, lds_cnt, sGexpr, vfree=None, sc1_in="", barrier_free=True, st=None, wait_g=None, wait_o=None, nt=""):
    va = Alloc(vfree if vfree else C.vfree, 256, "v"); sa = Alloc(C.sfree2, 100, "s")
    sW2 = sa(4); sWO = sa(4); sX = sa(4); sOut = sa(4); sB2 = sa(4); sP = sa(4); sP2 = sa(4)
    sG = sa(); sRing = sa(); sTso = sa(); sDso = sa(); sCnt = sa(); sT0 = sa(); sT1 = sa(); sT2 = sa(); sXo = sa(); sWo = sa()
    sWS = C.sWS; sI = C.sI; sJ = C.sJ
    g.c("==== M2 + WO")
    g(f"s_load_dwordx4 {S(sP,4)}, s[0:1], {KA_W2}")
    g(f"s_load_dwordx2 {S(sP2,2)}, s[0:1], {KA_WO}")
    g(f"s_load_dwordx2 {S(sP2+2,2)}, s[0:1], {KA_X}")
    g(f"s_load_dwordx2 {S(sOut,2)}, s[0:1], {KA_OUT}")
    g(f"s_mov_b32 s{sG}, {sGexpr}")
    g(f"s_mul_i32 s{sRing}, s{sG}, {RING}")
    g(f"s_add_u32 s{sRing}, s{sRing}, {lds_ring0}")
    vTsrc = va(); vTr = [va(), va()]; vDsrc = [va(), va(), va()]; vt = va(4, 4); vCnt = va(); vOne = va(); vL16 = va()
    vWsrc = [va() for _ in range(5)]; vWtr = va(); vXo = va(); vB2 = va()
    vXr = va(10, 2)
    TB = [va(12,4), va(12,4)]
    DEPTH = 6
    DR = va(80, 4)
    ACC = va(96, 4)
    acc = lambda a, b: ACC + (3*a+b)*16
    dma_voff_128(g, vTsrc, S_TOK*2, vt, vt+1)
    tr_addr_128(g, vTr[0], vTr[1], "perm", vt, vt+1, vt+2, sRing)
    g(f"v_lshlrev_b32 v{vL16}, 4, v0")
    g(f"v_mov_b32 v{vDsrc[0]}, v{vL16}")
    g(f"v_add_u32 v{vDsrc[1]}, {96*1024}, v{vL16}")
    g(f"v_and_b32 v{vDsrc[2]}, {0xffffffff ^ 256}, v{vL16}")
    g(f"v_add_u32 v{vDsrc[2]}, {2*96*1024}, v{vDsrc[2]}")
    g(f"v_mov_b32 v{vCnt}, {lds_cnt}")
    g(f"v_mov_b32 v{vOne}, 1")
    for u in range(5):
        g(f"v_add_u32 v{vt}, {64*u}, v0")
        g(f"v_mul_u32_u24 v{vt+1}, 52429, v{vt}")
        g(f"v_lshrrev_b32 v{vt+1}, 19, v{vt+1}")
        g(f"v_mul_u32_u24 v{vt+2}, 10, v{vt+1}")
        g(f"v_sub_u32 v{vt}, v{vt}, v{vt+2}")
        g(f"v_lshlrev_b32 v{vWsrc[u]}, 4, v{vt}")
        g(f"v_mul_u32_u24 v{vt+1}, 1280, v{vt+1}")
        g(f"v_add_u32 v{vWsrc[u]}, v{vWsrc[u]}, v{vt+1}")
    g(f"v_lshrrev_b32 v{vt}, 5, v0")
    g(f"v_lshlrev_b32 v{vt}, 3, v{vt}")
    g(f"v_bfe_u32 v{vt+1}, v0, 2, 2")
    g(f"v_add_u32 v{vt}, v{vt}, v{vt+1}")
    g(f"v_mul_u32_u24 v{vWtr}, 160, v{vt}")
    g(f"v_bfe_u32 v{vt+1}, v0, 4, 1")
    g(f"v_lshl_add_u32 v{vWtr}, v{vt+1}, 5, v{vWtr}")
    g(f"v_and_b32 v{vt+1}, 3, v0")
    g(f"v_lshl_add_u32 v{vWtr}, v{vt+1}, 3, v{vWtr}")
    g(f"v_add_u32 v{vWtr}, s{sRing}, v{vWtr}")
    g(f"v_and_b32 v{vt}, 31, v0")
    g(f"v_mul_u32_u24 v{vXo}, 1280, v{vt}")
    g(f"v_lshrrev_b32 v{vt+1}, 5, v0")
    g(f"v_lshl_add_u32 v{vXo}, v{vt+1}, 3, v{vXo}")
    g(f"s_lshl_b32 s{sT0}, s{sI}, 1")
    g(f"s_lshr_b32 s{sT1}, s{sG}, 1")
    g(f"s_add_u32 s{sT0}, s{sT0}, s{sT1}")
    g(f"s_lshl_b32 s{sT2}, s{sT0}, 6")
    g(f"s_mul_i32 s{sXo}, s{sT0}, {32*1280}")
    g(f"s_mul_i32 s{sT0}, s{sJ}, 160")
    g(f"s_add_u32 s{sXo}, s{sXo}, s{sT0}")
    g(f"s_and_b32 s{sT1}, s{sG}, 1")
    g(f"s_mul_i32 s{sT1}, s{sT1}, 80")
    g(f"s_add_u32 s{sXo}, s{sXo}, s{sT1}")
    g(f"s_mul_i32 s{sWo}, s{sG}, {160*1280}")
    g(f"s_add_u32 s{sWo}, s{sWo}, s{sT0}")
    g(f"s_mul_i32 s{sTso}, s{sG}, {384*S_TOK*2}")
    g(f"s_lshl_b32 s{sT1}, s{sI}, 7")
    g(f"s_add_u32 s{sTso}, s{sTso}, s{sT1}")
    g(f"s_mul_i32 s{sDso}, s{sJ}, {3*96*1024}")
    g(f"s_mul_i32 s{sT1}, s{sG}, {24*1024}")
    g(f"s_add_u32 s{sDso}, s{sDso}, s{sT1}")
    g(f"s_add_u32 s{sDso}, s{sDso}, {WS_GF}")
    g("s_waitcnt lgkmcnt(0)")
    srd(g, sW2, sP, sP+1, F*S_TOK*2)
    srd(g, sB2, sP+2, sP+3, S_TOK*2)
    srd(g, sWO, sP2, sP2+1, D*D*2)
    srd(g, sX, sP2+2, sP2+3, S_TOK*D*2)
    g(f"s_and_b32 s{sOut+1}, s{sOut+1}, 0xffff")
    g(f"s_mov_b32 s{sOut+2}, {S_TOK*D*2}")
    g(f"s_mov_b32 s{sOut+3}, 0x20000")
    for k in range(5):
        g(f"buffer_load_dwordx2 {V(vXr+2*k,2)}, v{vXo}, {S(sX,4)}, s{sXo} offen offset:{16*k}")
    g(f"v_and_b32 v{vt}, 31, v0")
    g(f"v_lshlrev_b32 v{vt}, 1, v{vt}")
    g(f"buffer_load_ushort v{vB2}, v{vt}, {S(sB2,4)}, s{sT2} offen")
    if wait_g: wait_g(g, sG, va, sa)
    if st: st.stamp("m2_start")
    stream_gemm(g, "m2", 24, DEPTH, S_TOK*2, sW2, sTso, vTsrc, sRing, vTr, [TB[0], TB[1]], "perm",
                sWS, sDso, vDsrc, DR, 3, acc, False, sc1=sc1_in, sCnt=sCnt, nt=nt)
    if st: st.stamp("m2_kend")
    def issue_wo(stage, slot):
        for u in range(5):
            g(f"s_add_u32 m0, s{sRing}, {slot*5120 + u*1024}")
            if u == 0: g(f"s_add_u32 s{sT1}, s{sWo}, {stage*32*1280}")
            else: g("s_nop 0")
            g(f"buffer_load_dwordx4 v{vWsrc[u]}, {S(sWO,4)}, s{sT1} offen lds")
    for s_ in range(3): issue_wo(s_, s_)
    if wait_o: wait_o(g, sG, va, sa)
    g(f"s_mul_i32 s{sDso}, s{sI}, 81920")
    g(f"s_mul_i32 s{sT0}, s{sG}, 10240")
    g(f"s_add_u32 s{sDso}, s{sDso}, s{sT0}")
    g(f"s_add_u32 s{sDso}, s{sDso}, {WS_OF}")
    g(f"v_add_u32 v{vDsrc[1]}, 40960, v{vL16}")
    for kk in range(10):
        if kk in (4, 8): g(f"s_add_u32 s{sDso}, s{sDso}, 4096")
        for ss in range(2):
            g(f"buffer_load_dwordx4 {V(DR+(2*kk+ss)*4,4)}, v{vL16 if ss==0 else vDsrc[1]}, {S(sWS,4)}, s{sDso} offen offset:{(kk%4)*1024}{sc1_in}")
    def wo_rd(kk, buf):
        stage = kk // 2; slot = stage % 3; m = kk % 2
        for a in range(3):
            for t in range(2):
                g(f"ds_read_b64_tr_b16 {V(TB[buf]+4*a+2*t,2)}, v{vWtr} offset:{slot*5120 + m*2560 + t*640 + a*64}")
    def wo_mf(kk, buf):
        for a in range(3):
            for ss in range(2):
                c = acc(ss, a)
                g(f"v_mfma_f32_32x32x16_bf16 {V(c,16)}, {V(TB[buf]+4*a,4)}, {V(DR+(2*kk+ss)*4,4)}, {V(c,16)}")
    vw = [16, 17, 18, 5, 0]
    g(f"s_waitcnt vmcnt({vw[0]})")
    wo_rd(0, 0)
    for kk in range(10):
        stage = kk // 2
        if kk < 9:
            if (kk+1) % 2 == 0:
                if stage < 2:
                    pass
                g(f"s_waitcnt lgkmcnt(0)")
                wo_mf(kk, kk % 2)
                if stage < 2: issue_wo(stage+3, stage % 3)
                g(f"s_waitcnt vmcnt({vw[stage+1]})")
                wo_rd(kk+1, (kk+1) % 2)
            else:
                wo_rd(kk+1, (kk+1) % 2)
                g("s_waitcnt lgkmcnt(6)")
                wo_mf(kk, kk % 2)
        else:
            g("s_waitcnt lgkmcnt(0)")
            wo_mf(kk, kk % 2)
    if st: st.stamp("wo_end")
    def quad(Q):
        ss = Q // 10; qq = Q % 10
        return acc(ss, qq // 4) + 4*(qq % 4)
    g(f"v_add_u32 v{vt}, s{sRing}, v{vL16}")
    g.nop(12)
    for o in range(4):
        g(f"s_cmp_eq_u32 s{sG}, {o}")
        g(f"s_cbranch_scc1 L_fin_w{o}")
        g(f"s_sub_u32 s{sT1}, {o+3}, s{sG}")
        g(f"s_and_b32 s{sT1}, s{sT1}, 3")
        g(f"s_mul_i32 s{sT1}, s{sT1}, 5120")
        g(f"v_add_u32 v{vt+1}, s{sT1}, v{vt}")
        for k in range(5):
            g(f"ds_write_b128 v{vt+1}, {V(quad(5*o+k),4)} offset:{k*1024}")
        g.label(f"L_fin_w{o}")
    g("s_waitcnt lgkmcnt(0)")
    lds_signal(g, vCnt, vOne, CNT_FA)
    OWN = DR
    for o in range(4):
        g(f"s_cmp_lg_u32 s{sG}, {o}")
        g(f"s_cbranch_scc1 L_fin_mv{o}")
        for k in range(5):
            for r in range(4): g(f"v_mov_b32 v{OWN+4*k+r}, v{quad(5*o+k)+r}")
        g.label(f"L_fin_mv{o}")
    spin_ge(g, vCnt, CNT_FA, vt+2, sT2, 4, "fina")
    for k3 in range(1, 4):
        g(f"s_add_u32 s{sT1}, s{sG}, {k3}")
        g(f"s_and_b32 s{sT1}, s{sT1}, 3")
        g(f"s_mul_i32 s{sT2}, s{sT1}, {RING}")
        g(f"s_add_u32 s{sT2}, s{sT2}, {lds_ring0 + ((-k3-1+4) & 3)*5120}")
        g(f"v_add_u32 v{vt+1}, s{sT2}, v{vL16}")
        for k in range(5):
            g(f"ds_read_b128 {V(OWN+20*k3+4*k,4)}, v{vt+1} offset:{k*1024}")
    g(f"v_lshlrev_b32 v{vB2}, 16, v{vB2}")
    for k in range(5):
        g(f"v_lshlrev_b32 v{ACC+4*k}, 16, v{vXr+2*k}")
        g(f"v_and_b32 v{ACC+4*k+1}, 0xffff0000, v{vXr+2*k}")
        g(f"v_lshlrev_b32 v{ACC+4*k+2}, 16, v{vXr+2*k+1}")
        g(f"v_and_b32 v{ACC+4*k+3}, 0xffff0000, v{vXr+2*k+1}")
    for r in range(20):
        g(f"v_add_f32 v{ACC+r}, v{ACC+r}, v{vB2}")
        g(f"v_add_f32 v{OWN+r}, v{OWN+r}, v{ACC+r}")
    g("s_waitcnt lgkmcnt(0)")
    for r in range(20):
        g(f"v_add_f32 v{OWN+20+r}, v{OWN+20+r}, v{OWN+40+r}")
        g(f"v_add_f32 v{OWN+r}, v{OWN+r}, v{OWN+60+r}")
    for r in range(20):
        g(f"v_add_f32 v{OWN+r}, v{OWN+r}, v{OWN+20+r}")
    for k in range(5):
        g(f"v_cvt_pk_bf16_f32 v{ACC+2*k}, v{OWN+4*k}, v{OWN+4*k+1}")
        g(f"v_cvt_pk_bf16_f32 v{ACC+2*k+1}, v{OWN+4*k+2}, v{OWN+4*k+3}")
        g(f"buffer_store_dwordx2 {V(ACC+2*k,2)}, v{vXo}, {S(sOut,4)}, s{sXo} offen offset:{16*k}")
    if st: st.stamp("fin_end")
    return va.p

def gen_l3(name="fin_kernel", stamps=False, nt=""):
    from prep import wg_map
    from attn import Common
    g = Gen(); C = Common()
    st = Stamps(g, 70, 12) if stamps else None
    sa = Alloc(4, 100, "s")
    C.sWS = sa(4); sP = sa(2); C.sI = sa(); C.sJ = sa(); C.sW = sa(); sT = sa()
    C.sfree2 = sa.p; C.vfree = 2
    g.raw(kernel_header(name))
    g("s_cmp_ge_u32 s2, 256")
    g("s_cbranch_scc1 L_fin_end")
    if st: st.stamp("rstart", real=True); st.stamp("start")
    g(f"s_load_dwordx2 {S(sP,2)}, s[0:1], {KA_WS}")
    g(f"v_lshrrev_b32 v1, 6, v0")
    g(f"v_and_b32 v0, 63, v0")
    g(f"v_readfirstlane_b32 s{C.sW}, v1")
    wg_map(g, C.sI, C.sJ, sT)
    CNT = 4*RING
    g(f"v_mov_b32 v1, 0")
    g(f"v_lshlrev_b32 v2, 2, v0")
    g(f"v_add_u32 v2, {CNT}, v2")
    g(f"ds_write_b32 v2, v1")
    g("s_waitcnt lgkmcnt(0)")
    g("s_barrier")
    srd(g, C.sWS, sP, sP+1, WS_SIZE)
    nv = gen_m2wo(g, C, 0, CNT, f"s{C.sW}", st=st, nt=nt)
    if st:
        st.stamp("end"); st.stamp("rend", real=True)
        g(f"s_lshl_b32 s{sT}, s2, 3")
        g(f"s_add_u32 s{sT}, s{sT}, s{C.sW}")
        g(f"s_lshl_b32 s{sT}, s{sT}, 7")
        g(f"s_add_u32 s{sT}, s{sT}, {WS_DBG + 0x80000}")
        st.dump(C.sWS, sT, 1, 2)
    g.label("L_fin_end")
    g("s_endpgm")
    gen_l3.st = st
    return g.text(), kernel_desc(name, nv), CNT + 256, nv
```

```python
S_TOK = 2048; D = 640; H = 32; DH = 20; F = 1536
KA_X=0; KA_WQ=8; KA_WK=16; KA_WV=24; KA_WO=32; KA_BX=40; KA_W1=48; KA_B1=56; KA_W2=64; KA_B2=72; KA_OUT=80; KA_DBG=88; KA_WS=96
QF_WG   = 10240
WS_QF   = 0
KV_TILE = 2624
KV_KHI  = 1024
KV_V    = 1280
WS_KV   = 0x280000
WS_KMAX = 0x2B0000
WS_FLAG = 0x2B1000
WS_HF   = 0x300000
WS_GF   = 0x580000
WS_OF   = 0x800000
WS_YP   = 0xB00000
WS_SIZE = 268435456
QSCALE = (20 ** -0.5) * 1.4426950408889634
def vslot(dim):
    if dim < 4: return dim
    if dim < 14: return dim + 7
    return dim - 10
ONES_SLOT = 10
WS_DBG = 0x1000000
```

```python
from asm import *
from layout import *
from prep import wg_map
import attn, gemm
from attn import Common

LDS_RING0 = 94336
assert LDS_RING0 >= attn.LDS_ATT_END and LDS_RING0 % 128 == 0
MAIN_LDS = LDS_RING0 + 4*gemm.RING

def gen_main(name="main_kernel", stamps=False, nt="", **kw):
    g = Gen(); C = Common()
    st = Stamps(g, 60, 16) if stamps else None
    st2 = Stamps(g, 60, 16) if stamps else None
    sa = Alloc(4, 100, "s")
    C.sWS = sa(4); sP = sa(2); C.sI = sa(); C.sJ = sa(); C.sW = sa(); sT = sa()
    C.sfree = sa.p; C.vfree = 2
    g.raw(kernel_header(name))
    g("s_cmp_ge_u32 s2, 256")
    g("s_cbranch_scc1 L_main_end")
    if st: st.stamp("rstart", real=True); st.stamp("start"); st2.k = 2; st2.names = ["rstart", "start"]
    g(f"s_load_dwordx2 {S(sP,2)}, s[0:1], {KA_WS}")
    g(f"v_lshrrev_b32 v1, 6, v0")
    g(f"v_and_b32 v0, 63, v0")
    g(f"v_readfirstlane_b32 s{C.sW}, v1")
    wg_map(g, C.sI, C.sJ, sT)
    g("s_waitcnt lgkmcnt(0)")
    srd(g, C.sWS, sP, sP+1, WS_SIZE)
    g(f"s_cmp_ge_u32 s{C.sW}, 4")
    g("s_cbranch_scc1 L_main_gemm")
    nv1 = attn.gen_attn(g, C, st=st, **kw)
    g("s_endpgm")
    g.raw(".p2align 6")
    g.label("L_main_gemm")
    nv2 = gemm.gen_m1(g, C, LDS_RING0, attn.LDS_CNT, st=st2, nt=nt)
    if st2:
        st2.stamp("end"); st2.stamp("rend", real=True)
        g(f"s_lshl_b32 s{sT}, s2, 3")
        g(f"s_add_u32 s{sT}, s{sT}, s{C.sW}")
        g(f"s_lshl_b32 s{sT}, s{sT}, 7")
        g(f"s_add_u32 s{sT}, s{sT}, {WS_DBG}")
        st2.dump(C.sWS, sT, 1, 2)
    g.label("L_main_end")
    g("s_endpgm")
    gen_main.st = st; gen_main.st2 = st2
    nv = max(nv1, nv2)
    return g.text(), kernel_desc(name, nv), MAIN_LDS, nv
if __name__ == "__main__":
    t, d, lds, nv = gen_main()
    print("lds", lds, "vgprs", nv, "lines", t.count("\n"))
```

```python
from asm import *
from layout import *
import struct
def f32(x):
    return "0x%08x" % struct.unpack("<I", struct.pack("<f", x))[0]

LDS_WQ = 0
LDS_KV = 102400
LDS_T  = LDS_KV + 28672
PREP_LDS = LDS_T + 10240 + 512

def wg_map(g, s_i, s_j, s_tmp):
    g(f"s_and_b32 s{s_i}, s2, 7")
    g(f"s_lshl_b32 s{s_i}, s{s_i}, 2")
    g(f"s_lshr_b32 s{s_tmp}, s2, 3")
    g(f"s_and_b32 s{s_tmp}, s{s_tmp}, 3")
    g(f"s_add_u32 s{s_i}, s{s_i}, s{s_tmp}")
    g(f"s_lshr_b32 s{s_j}, s2, 5")

def gen_prep(name="prep_kernel", stamps=False, nt_x="", nt_w=""):
    g = Gen()
    st = Stamps(g, 60, 16) if stamps else None
    va = Alloc(1, 256, "v"); sa = Alloc(4, 100, "s")
    sX = sa(4); sWQ = sa(4); sKV = sa(4); sWS = sa(4)
    sP0 = sa(4); sP1 = sa(4); sP2 = sa(2)
    sI = sa(); sJ = sa(); sW = sa(); sT0 = sa(); sT1 = sa(); sT2 = sa(); sXoff = sa(); sM0 = sa(); sSo = sa(); sKs = sa(); sTile = sa()
    sEx = sa(2)
    g.raw(kernel_header(name))
    g("s_cmp_ge_u32 s2, 256")
    g("s_cbranch_scc1 L_prep_end")
    if st: st.stamp("rstart", real=True); st.stamp("start")
    g(f"s_load_dwordx4 {S(sP0,4)}, s[0:1], {KA_X}")
    g(f"s_load_dwordx4 {S(sP1,4)}, s[0:1], {KA_WK}")
    g(f"s_load_dwordx2 {S(sP2,2)}, s[0:1], {KA_WS}")
    vT = va(); vG = va(); vXo = va(); vTmp = va(); vTmp2 = va(); vTmp3 = va()
    g(f"v_lshrrev_b32 v{vTmp}, 6, v0")
    g(f"v_and_b32 v0, 63, v0")
    g(f"v_readfirstlane_b32 s{sW}, v{vTmp}")
    g(f"v_and_b32 v{vT}, 15, v0")
    g(f"v_lshrrev_b32 v{vG}, 4, v0")
    wg_map(g, sI, sJ, sT0)
    g(f"v_mul_u32_u24 v{vXo}, 1280, v{vT}")
    g(f"v_lshl_add_u32 v{vXo}, v{vG}, 4, v{vXo}")
    g(f"s_lshl_b32 s{sT0}, s{sI}, 2")
    g(f"s_add_u32 s{sKs}, s{sT0}, s{sW}")
    g(f"s_mul_i32 s{sXoff}, s{sKs}, {16*1280}")
    vWo = [va() for _ in range(5)]
    for u in range(5):
        g(f"v_add_u32 v{vTmp}, {64*u}, v0")
        g(f"v_mul_u32_u24 v{vTmp2}, 52429, v{vTmp}")
        g(f"v_lshrrev_b32 v{vTmp2}, 19, v{vTmp2}")
        g(f"v_mul_u32_u24 v{vTmp3}, 10, v{vTmp2}")
        g(f"v_sub_u32 v{vTmp}, v{vTmp}, v{vTmp3}")
        g(f"v_lshlrev_b32 v{vWo[u]}, 4, v{vTmp}")
        g(f"v_bfe_u32 v{vTmp}, v{vTmp2}, 2, 2")
        g(f"v_lshlrev_b32 v{vTmp}, 3, v{vTmp}")
        g(f"v_lshrrev_b32 v{vTmp3}, 4, v{vTmp2}")
        g(f"v_lshl_add_u32 v{vTmp}, v{vTmp3}, 2, v{vTmp}")
        g(f"v_and_b32 v{vTmp3}, 3, v{vTmp2}")
        g(f"v_add_u32 v{vTmp}, v{vTmp}, v{vTmp3}")
        g(f"v_mul_u32_u24 v{vTmp}, 1280, v{vTmp}")
        g(f"v_add_u32 v{vWo[u]}, v{vWo[u]}, v{vTmp}")
    vL16 = va()
    g(f"v_lshlrev_b32 v{vL16}, 4, v0")
    g("s_waitcnt lgkmcnt(0)")
    if st: st.stamp("karg")
    srd(g, sX, sP0, sP0+1, S_TOK*D*2)
    srd(g, sWQ, sP0+2, sP0+3, D*D*2)
    srd(g, sWS, sP2, sP2+1, WS_SIZE)
    g(f"s_cmp_eq_u32 s{sJ}, 1")
    g(f"s_cselect_b32 s{sKV}, s{sP1+2}, s{sP1}")
    g(f"s_cselect_b32 s{sKV+1}, s{sP1+3}, s{sP1+1}")
    g(f"s_and_b32 s{sKV+1}, s{sKV+1}, 0xffff")
    g(f"s_cmp_lt_u32 s{sJ}, 2")
    g(f"s_cselect_b32 s{sKV+2}, {D*DH*2}, 0")
    g(f"s_mov_b32 s{sKV+3}, 0x20000")
    X = va(80, 4); HX = va(12, 4)
    for m in range(20):
        g(f"buffer_load_dwordx4 {V(X+4*m,4)}, v{vXo}, {S(sX,4)}, s{sXoff} offen offset:{64*m}{nt_x}")
    g(f"s_mul_i32 s{sT0}, s{sJ}, 160")
    g(f"s_add_u32 s{sT1}, s{sXoff}, s{sT0}")
    for u in range(3):
        g(f"buffer_load_dwordx4 {V(HX+4*u,4)}, v{vXo}, {S(sX,4)}, s{sT1} offen offset:{64*u}{nt_x}")
    g(f"s_mul_i32 s{sM0}, s{sW}, 5120")
    g(f"s_mul_i32 s{sSo}, s{sW}, 40960")
    g(f"s_add_u32 s{sSo}, s{sSo}, s{sT0}")
    for mm in range(5):
        if mm:
            g(f"s_add_u32 s{sSo}, s{sSo}, {4*40960}")
        for u in range(5):
            g(f"s_add_u32 m0, s{sM0}, {mm*20480 + u*1024 + LDS_WQ}")
            g("s_nop 0")
            g(f"buffer_load_dwordx4 v{vWo[u]}, {S(sWQ,4)}, s{sSo} offen{nt_w} lds")
    g(f"s_lshl_b32 s{sT1}, s{sW}, 10")
    for nn in range(7):
        g(f"s_add_u32 m0, s{sT1}, {LDS_KV + nn*4096}")
        g(f"s_add_u32 s{sT2}, s{sT1}, {nn*4096}")
        g(f"buffer_load_dwordx4 v{vL16}, {S(sKV,4)}, s{sT2} offen lds")
    NAFTER = 3 + 25 + 7
    if st: st.stamp("issued")
    vTrQ0 = va(); vTrQ1 = va(); vTrKV = va()
    g(f"v_bfe_u32 v{vTmp}, v0, 2, 2")
    g(f"v_and_b32 v{vTmp2}, 3, v0")
    g(f"v_lshl_add_u32 v{vTmp3}, v{vG}, 2, v{vTmp}")
    g(f"v_mul_u32_u24 v{vTrQ0}, 160, v{vTmp3}")
    g(f"v_lshl_add_u32 v{vTrQ0}, v{vTmp2}, 3, v{vTrQ0}")
    g(f"v_add_u32 v{vTrQ1}, {51200}, v{vTrQ0}")
    g(f"v_lshl_add_u32 v{vTmp3}, v{vG}, 3, v{vTmp}")
    g(f"v_mul_u32_u24 v{vTrKV}, 40, v{vTmp3}")
    g(f"v_lshl_add_u32 v{vTrKV}, v{vTmp2}, 3, v{vTrKV}")
    g(f"v_add_u32 v{vTrKV}, {LDS_KV}, v{vTrKV}")
    vHw = va(); vHr = va()
    g(f"s_mul_i32 s{sT1}, s{sW}, 2560")
    g(f"s_add_u32 s{sT1}, s{sT1}, {LDS_T}")
    g(f"v_mul_u32_u24 v{vHw}, 160, v{vT}")
    g(f"v_lshl_add_u32 v{vHw}, v{vG}, 4, v{vHw}")
    g(f"v_add_u32 v{vHw}, s{sT1}, v{vHw}")
    g(f"v_lshrrev_b32 v{vTmp3}, 1, v{vG}")
    g(f"v_lshl_add_u32 v{vTmp3}, v{vTmp3}, 3, v{vTmp}")
    g(f"v_mul_u32_u24 v{vHr}, 160, v{vTmp3}")
    g(f"v_lshl_add_u32 v{vHr}, v{vTmp2}, 3, v{vHr}")
    g(f"v_and_b32 v{vTmp3}, 1, v{vG}")
    g(f"v_lshl_add_u32 v{vHr}, v{vTmp3}, 5, v{vHr}")
    g(f"v_add_u32 v{vHr}, s{sT1}, v{vHr}")
    vHd = [va() for _ in range(3)]
    g(f"s_mul_i32 s{sT1}, s{sJ}, 5")
    for u in range(3):
        g(f"v_and_b32 v{vTmp3}, 1, v{vG}")
        g(f"v_add_u32 v{vTmp3}, s{sT1}, v{vTmp3}")
        g(f"v_add_u32 v{vTmp3}, {2*u}, v{vTmp3}")
        g(f"v_lshrrev_b32 v{vTmp}, 1, v{vTmp3}")
        g(f"v_lshlrev_b32 v{vHd[u]}, 17, v{vTmp}")
        g(f"v_and_b32 v{vTmp3}, 1, v{vTmp3}")
        g(f"v_lshl_add_u32 v{vTmp3}, v{vTmp3}, 4, v{vT}")
        g(f"v_lshl_add_u32 v{vHd[u]}, v{vTmp3}, 4, v{vHd[u]}")
        g(f"v_lshrrev_b32 v{vTmp}, 1, v{vG}")
        g(f"v_lshl_add_u32 v{vHd[u]}, v{vTmp}, 9, v{vHd[u]}")
    sHso = sa()
    g(f"s_lshl_b32 s{sHso}, s{sKs}, 10")
    g(f"s_add_u32 s{sHso}, s{sHso}, {WS_HF}")
    vQd = [va() for _ in range(5)]
    g(f"s_and_b32 s{sT1}, s{sW}, 1")
    g(f"s_lshl_b32 s{sT1}, s{sT1}, 4")
    vTT = va()
    g(f"v_add_u32 v{vTT}, s{sT1}, v{vT}")
    for ct in range(5):
        g(f"v_add_u32 v{vTmp}, {4*ct}, v{vG}")
        g(f"v_mul_u32_u24 v{vTmp2}, 52, v{vTmp}")
        g(f"v_lshrrev_b32 v{vTmp2}, 8, v{vTmp2}")
        g(f"v_mul_u32_u24 v{vTmp3}, 5, v{vTmp2}")
        g(f"v_sub_u32 v{vTmp}, v{vTmp}, v{vTmp3}")
        g(f"v_mul_u32_u24 v{vQd[ct]}, 2560, v{vTmp2}")
        g(f"v_lshrrev_b32 v{vTmp2}, 1, v{vTmp}")
        g(f"v_lshlrev_b32 v{vTmp2}, 9, v{vTmp2}")
        g(f"v_lshl_add_u32 v{vTmp2}, v{vTT}, 4, v{vTmp2}")
        g(f"v_and_b32 v{vTmp3}, 1, v{vTmp}")
        g(f"v_lshl_add_u32 v{vTmp2}, v{vTmp3}, 3, v{vTmp2}")
        g(f"v_lshlrev_b32 v{vTmp3}, 3, v{vTT}")
        g(f"v_add_u32 v{vTmp3}, 1024, v{vTmp3}")
        g(f"v_cmp_eq_u32 vcc, 4, v{vTmp}")
        g("s_nop 1")
        g(f"v_cndmask_b32 v{vTmp2}, v{vTmp2}, v{vTmp3}, vcc")
        g(f"v_add_u32 v{vQd[ct]}, v{vQd[ct]}, v{vTmp2}")
    sQso = sa()
    g(f"s_lshl_b32 s{sT1}, s{sI}, 3")
    g(f"s_add_u32 s{sT1}, s{sT1}, s{sJ}")
    g(f"s_mul_i32 s{sQso}, s{sT1}, {QF_WG}")
    g(f"s_lshr_b32 s{sT1}, s{sW}, 1")
    g(f"s_mul_i32 s{sT1}, s{sT1}, 1280")
    g(f"s_add_u32 s{sQso}, s{sQso}, s{sT1}")
    g(f"s_add_u32 s{sQso}, s{sQso}, {WS_QF}")
    g(f"s_lshr_b32 s{sTile}, s{sKs}, 1")
    g(f"s_mul_i32 s{sTile}, s{sTile}, {KV_TILE}")
    g(f"s_add_u32 s{sTile}, s{sTile}, {WS_KV}")
    if st: st.stamp("addr")
    vS = va(2, 2); vQ = va(2, 2)
    for r in (vS, vS+1, vQ, vQ+1):
        g(f"v_mov_b32 v{r}, 0")
    for m in range(20):
        g(f"s_waitcnt vmcnt({NAFTER + 19 - m})")
        for r in range(4):
            g(f"v_dot2c_f32_bf16 v{vS + (r&1)}, 0x3f803f80, v{X+4*m+r}")
            g(f"v_dot2c_f32_bf16 v{vQ + (r&1)}, v{X+4*m+r}, v{X+4*m+r}")
    if st: st.stamp("xlanded")
    g.nop(3)
    g(f"v_add_f32 v{vS}, v{vS}, v{vS+1}")
    g(f"v_add_f32 v{vQ}, v{vQ}, v{vQ+1}")
    def xreduce(reg, op="v_add_f32"):
        g(f"v_mov_b32 v{vTmp}, v{reg}")
        g.nop(2)
        g(f"v_permlane16_swap_b32 v{reg}, v{vTmp}")
        g.nop(1)
        g(f"{op} v{reg}, v{reg}, v{vTmp}")
        g(f"v_mov_b32 v{vTmp}, v{reg}")
        g.nop(2)
        g(f"v_permlane32_swap_b32 v{reg}, v{vTmp}")
        g.nop(1)
        g(f"{op} v{reg}, v{reg}, v{vTmp}")
    xreduce(vS); xreduce(vQ)
    vRS = va(2, 2); vNB = va(2, 2); vRS2 = va(2, 2); vNB2 = va(2, 2)
    g(f"v_mul_f32 v{vS}, {f32(1/640)}, v{vS}")
    g(f"v_mul_f32 v{vQ}, {f32(1/640)}, v{vQ}")
    g(f"v_fma_f32 v{vQ}, -v{vS}, v{vS}, v{vQ}")
    g(f"v_max_f32 v{vQ}, 0, v{vQ}")
    g(f"v_add_f32 v{vTmp}, {f32(1e-5)}, v{vQ}")
    g(f"v_rsq_f32 v{vRS}, v{vTmp}")
    g.nop(1)
    g(f"v_mul_f32 v{vNB}, v{vS}, v{vRS}")
    g(f"v_sub_f32 v{vNB}, 0, v{vNB}")
    g(f"v_mul_f32 v{vTmp}, v{vRS}, v{vRS}")
    g(f"v_mul_f32 v{vTmp}, v{vTmp}, v{vQ}")
    g(f"v_add_f32 v{vTmp}, {f32(1e-5)}, v{vTmp}")
    g(f"v_rsq_f32 v{vTmp}, v{vTmp}")
    g.nop(1)
    g(f"v_mul_f32 v{vRS2}, v{vRS}, v{vTmp}")
    g(f"v_mul_f32 v{vNB2}, v{vNB}, v{vTmp}")
    vP = va(8, 2)
    def norm(reg, n, rs, nb):
        for k in range(0, n, 4):
            for r in range(4):
                g(f"v_lshlrev_b32 v{vP+2*r}, 16, v{reg+k+r}")
                g(f"v_and_b32 v{vP+2*r+1}, 0xffff0000, v{reg+k+r}")
            for r in range(4):
                g(f"v_pk_fma_f32 {V(vP+2*r,2)}, {V(vP+2*r,2)}, {V(rs,2)}, {V(nb,2)} op_sel_hi:[1,0,0]")
            for r in range(4):
                g(f"v_cvt_pk_bf16_f32 v{reg+k+r}, v{vP+2*r}, v{vP+2*r+1}")
    g(f"s_waitcnt vmcnt({NAFTER-3})")
    norm(HX, 12, vRS2, vNB2)
    g(f"ds_write_b128 v{vHw}, {V(HX,4)}")
    g(f"ds_write_b128 v{vHw}, {V(HX+4,4)} offset:64")
    g("s_mov_b32 exec_hi, 0")
    g(f"ds_write_b128 v{vHw}, {V(HX+8,4)} offset:128")
    g("s_mov_b32 exec_hi, -1")
    g("s_waitcnt lgkmcnt(0)")
    for u in range(3):
        g(f"ds_read_b64_tr_b16 {V(HX+4*u,2)}, v{vHr} offset:{64*u}")
        g(f"ds_read_b64_tr_b16 {V(HX+4*u+2,2)}, v{vHr} offset:{64*u+640}")
    norm(X, 80, vRS, vNB)
    g("s_waitcnt lgkmcnt(0)")
    g(f"buffer_store_dwordx4 {V(HX,4)}, v{vHd[0]}, {S(sWS,4)}, s{sHso} offen")
    g(f"buffer_store_dwordx4 {V(HX+4,4)}, v{vHd[1]}, {S(sWS,4)}, s{sHso} offen")
    g("s_mov_b32 exec_lo, 0xffff")
    g("s_mov_b32 exec_hi, 0xffff")
    g(f"buffer_store_dwordx4 {V(HX+8,4)}, v{vHd[2]}, {S(sWS,4)}, s{sHso} offen")
    g("s_mov_b64 exec, -1")
    if st: st.stamp("normed")
    g("s_waitcnt vmcnt(3)")
    if st: st.stamp("wqland")
    g("s_barrier")
    if st: st.stamp("bar")
    AB = [va(20, 4), va(20, 4)]
    accQ = va(20, 4); accKV = va(8, 4)
    for r in range(20): g(f"v_mov_b32 v{accQ+r}, 0")
    for r in range(8): g(f"v_mov_b32 v{accKV+r}, 0")
    def rdq(m):
        b = AB[m & 1]
        base = vTrQ0 if m < 10 else vTrQ1
        mo = (m if m < 10 else m - 10) * 5120
        for ct in range(5):
            for t in range(2):
                g(f"ds_read_b64_tr_b16 {V(b+4*ct+2*t,2)}, v{base} offset:{mo + t*2560 + ct*32}")
    rdq(0)
    for m in range(20):
        if m < 19:
            rdq(m+1)
            g("s_waitcnt lgkmcnt(10)")
        else:
            g("s_waitcnt lgkmcnt(0)")
        b = AB[m & 1]
        for ct in range(5):
            g(f"v_mfma_f32_16x16x32_bf16 {V(accQ+4*ct,4)}, {V(b+4*ct,4)}, {V(X+4*m,4)}, {V(accQ+4*ct,4)}")
    if st: st.stamp("qproj")
    g(f"s_cmp_ge_u32 s{sJ}, 2")
    g("s_cbranch_scc1 L_prep_q")
    def rdkv(m):
        b = AB[m & 1]
        for tile in range(2):
            for t in range(2):
                g(f"ds_read_b64_tr_b16 {V(b+4*tile+2*t,2)}, v{vTrKV} offset:{m*1280 + t*160 + tile*32}")
    for which in ("K", "V"):
        if which == "K":
            g(f"s_cmp_eq_u32 s{sJ}, 1")
            g("s_cbranch_scc1 L_prep_v")
        else:
            g.label("L_prep_v")
        rdkv(0)
        for m in range(20):
            if m < 19:
                rdkv(m+1)
                g("s_waitcnt lgkmcnt(4)")
            else:
                g("s_waitcnt lgkmcnt(0)")
            b = AB[m & 1]
            for tile in range(2):
                if which == "K":
                    g(f"v_mfma_f32_16x16x32_bf16 {V(accKV+4*tile,4)}, {V(b+4*tile,4)}, {V(X+4*m,4)}, {V(accKV+4*tile,4)}")
                else:
                    g(f"v_mfma_f32_16x16x32_bf16 {V(accKV+4*tile,4)}, {V(X+4*m,4)}, {V(b+4*tile,4)}, {V(accKV+4*tile,4)}")
        g.nop(8)
        b = AB[0]
        if which == "K":
            g(f"v_mul_f32 v{vS}, v{accKV}, v{accKV}")
            for r in range(1, 4):
                g(f"v_fmac_f32 v{vS}, v{accKV+r}, v{accKV+r}")
            g(f"v_mul_f32 v{vQ}, v{accKV+4}, v{accKV+4}")
            for r in range(1, 4):
                g(f"v_fmac_f32 v{vQ}, v{accKV+4+r}, v{accKV+4+r}")
            g(f"v_cmp_eq_u32 vcc, 0, v{vG}")
            g.nop(2)
            g(f"v_cndmask_b32 v{vQ}, 0, v{vQ}, vcc")
            g(f"v_add_f32 v{vS}, v{vS}, v{vQ}")
            xreduce(vS)
            for rot in (8, 4, 2, 1):
                g.nop(2)
                g(f"v_max_f32_dpp v{vS}, v{vS}, v{vS} row_ror:{rot} row_mask:0xf bank_mask:0xf")
            for tile in range(2):
                g(f"v_cvt_pk_bf16_f32 v{b+2*tile}, v{accKV+4*tile}, v{accKV+4*tile+1}")
                g(f"v_cvt_pk_bf16_f32 v{b+2*tile+1}, v{accKV+4*tile+2}, v{accKV+4*tile+3}")
            g(f"v_lshrrev_b32 v{vTmp}, 1, v{vG}")
            g(f"v_lshlrev_b32 v{vTmp}, 9, v{vTmp}")
            g(f"v_lshl_add_u32 v{vTmp}, v{vTT}, 4, v{vTmp}")
            g(f"v_and_b32 v{vTmp2}, 1, v{vG}")
            g(f"v_lshl_add_u32 v{vTmp}, v{vTmp2}, 3, v{vTmp}")
            g(f"buffer_store_dwordx2 {V(b,2)}, v{vTmp}, {S(sWS,4)}, s{sTile} offen")
            g(f"v_lshlrev_b32 v{vTmp2}, 3, v{vTT}")
            g("s_mov_b64 exec, 0xffff")
            g(f"buffer_store_dwordx2 {V(b+2,2)}, v{vTmp2}, {S(sWS,4)}, s{sTile} offen offset:{KV_KHI}")
            g("s_mov_b64 exec, 1")
            g(f"s_lshl_b32 s{sT1}, s{sKs}, 2")
            g(f"s_add_u32 s{sT1}, s{sT1}, {WS_KMAX}")
            g(f"v_mov_b32 v{vTmp3}, 0")
            g(f"buffer_store_dword v{vS}, v{vTmp3}, {S(sWS,4)}, s{sT1} offen")
            g("s_mov_b64 exec, -1")
            g("s_branch L_prep_q")
        else:
            for tile in range(2):
                g(f"v_cvt_pk_bf16_f32 v{b+2*tile}, v{accKV+4*tile}, v{accKV+4*tile+1}")
                g(f"v_cvt_pk_bf16_f32 v{b+2*tile+1}, v{accKV+4*tile+2}, v{accKV+4*tile+3}")
            g(f"s_and_b32 s{sT1}, s{sW}, 1")
            g(f"s_mul_i32 s{sT1}, s{sT1}, 672")
            g(f"s_add_u32 s{sT1}, s{sT1}, s{sTile}")
            g(f"s_add_u32 s{sT1}, s{sT1}, {KV_V}")
            g(f"v_and_b32 v{vTmp2}, 1, v{vG}")
            g(f"v_mul_u32_u24 v{vTmp2}, 336, v{vTmp2}")
            g(f"v_lshrrev_b32 v{vTmp3}, 1, v{vG}")
            g(f"v_lshl_add_u32 v{vTmp2}, v{vTmp3}, 3, v{vTmp2}")
            g(f"v_add_u32 v{vTmp}, 7, v{vT}")
            g(f"v_cmp_gt_u32 vcc, 4, v{vT}")
            g.nop(2)
            g(f"v_cndmask_b32 v{vTmp}, v{vTmp}, v{vT}, vcc")
            g(f"v_subrev_u32 v{vTmp3}, 10, v{vT}")
            g(f"v_cmp_le_u32 vcc, 14, v{vT}")
            g.nop(2)
            g(f"v_cndmask_b32 v{vTmp}, v{vTmp}, v{vTmp3}, vcc")
            g(f"v_lshl_add_u32 v{vTmp}, v{vTmp}, 4, v{vTmp2}")
            g(f"buffer_store_dwordx2 {V(b,2)}, v{vTmp}, {S(sWS,4)}, s{sT1} offen")
            g(f"v_add_u32 v{vTmp}, 6, v{vT}")
            g(f"v_lshl_add_u32 v{vTmp}, v{vTmp}, 4, v{vTmp2}")
            g("s_mov_b32 exec_lo, 0x000f000f")
            g("s_mov_b32 exec_hi, 0x000f000f")
            g(f"buffer_store_dwordx2 {V(b+2,2)}, v{vTmp}, {S(sWS,4)}, s{sT1} offen")
            g("s_mov_b64 exec, 3")
            g(f"v_mul_u32_u24 v{vTmp}, 336, v0")
            for r in range(4):
                g(f"v_mov_b32 v{b+4+r}, 0x3f803f80")
            g(f"buffer_store_dwordx4 {V(b+4,4)}, v{vTmp}, {S(sWS,4)}, s{sT1} offen offset:{ONES_SLOT*16}")
            g("s_mov_b64 exec, -1")
    g.label("L_prep_q")
    g.nop(8)
    b = AB[1]
    sSc = sa()
    g(f"s_mov_b32 s{sSc}, {f32(QSCALE)}")
    for ct in range(5):
        for r in range(4):
            g(f"v_mul_f32 v{accQ+4*ct+r}, s{sSc}, v{accQ+4*ct+r}")
        g(f"v_cvt_pk_bf16_f32 v{b+2*ct}, v{accQ+4*ct}, v{accQ+4*ct+1}")
        g(f"v_cvt_pk_bf16_f32 v{b+2*ct+1}, v{accQ+4*ct+2}, v{accQ+4*ct+3}")
        g(f"buffer_store_dwordx2 {V(b+2*ct,2)}, v{vQd[ct]}, {S(sWS,4)}, s{sQso} offen")
    if st:
        st.stamp("end"); st.stamp("rend", real=True)
        g(f"s_lshl_b32 s{sT0}, s2, 3")
        g(f"s_add_u32 s{sT0}, s{sT0}, s{sW}")
        g(f"s_lshl_b32 s{sT0}, s{sT0}, 7")
        g(f"s_add_u32 s{sT0}, s{sT0}, {WS_DBG + 0x100000}")
        st.dump(sWS, sT0, vTmp, vTmp2)
    g.label("L_prep_end")
    g("s_endpgm")
    gen_prep.st = st
    nv = va.p
    return g.text(), kernel_desc(name, nv), PREP_LDS, nv

if __name__ == "__main__":
    t, d, lds, nv = gen_prep()
    print("lds", lds, "vgprs", nv, "lines", t.count("\n"))
```

```python
import build, prep, mainK, gemm, sys
def make(path, prep_kw={}, main_kw={}, fin_kw={}, extra=None):
    t, d, lds, nv = prep.gen_prep(**prep_kw)
    t2, d2, lds2, nv2 = mainK.gen_main(**main_kw)
    t3, d3, lds3, nv3 = gemm.gen_l3(**fin_kw)
    ks = [('prep_kernel', 256, 256, lds, t, d), ('main_kernel', 256, 512, lds2, t2, d2), ('fin_kernel', 256, 256, lds3, t3, d3)]
    if extra: ks = extra(ks)
    build.build(ks, path)
if __name__ == "__main__":
    from asm import *
    make("v_base.s")
    make("v_ntw.s", dict(nt_x=" nt"), dict(nt=" nt"), dict(nt=" nt"))
    make("v_ntall.s", dict(nt_x=" nt", nt_w=" nt"), dict(nt=" nt"), dict(nt=" nt"))
    e = kernel_header("empty_kernel") + "    s_endpgm\n"
    make("v_empty.s", extra=lambda ks: [("empty_kernel", 256, 256, 0, e, kernel_desc("empty_kernel", 8))] + ks)
    make("v_prep2.s", extra=lambda ks: [ks[0]] + ks)
    make("v_fin2.s", extra=lambda ks: ks + [ks[2]])
```

```python
import re, sys
TRANS = ("v_exp_f32","v_log_f32","v_rcp_f32","v_rsq_f32","v_sqrt_f32","v_sin_f32","v_cos_f32","v_exp_f16","v_rcp_f16")
def regs(tok):
    tok = tok.strip()
    m = re.fullmatch(r"-?\|?([vsa])(\d+)\|?", tok)
    if m: return [(m.group(1), int(m.group(2)))]
    m = re.fullmatch(r"-?([vsa])\[(\d+):(\d+)\]", tok)
    if m: return [(m.group(1), k) for k in range(int(m.group(2)), int(m.group(3))+1)]
    if tok == "vcc": return [("s", "vcc")]
    if tok in ("vcc_lo","vcc_hi"): return [("s","vcc")]
    if tok in ("exec","exec_lo","exec_hi"): return [("s","exec")]
    if tok == "m0": return [("s","m0")]
    return []
class I:
    __slots__ = ("txt","op","w","r","kind","line","passes","cread","nop","target","sw")
def parse(line, ln):
    t = line.split(";")[0].strip()
    if not t or t.endswith(":") or t.startswith("."): return None
    parts = t.split(None, 1)
    op = parts[0]; rest = parts[1] if len(parts) > 1 else ""
    ops = [x.strip() for x in re.split(r",(?![^\[]*\])", rest)] if rest else []
    if ops:
        last = ops[-1].split()
        mods = last[1:]; ops[-1] = last[0] if last else ""
    else: mods = []
    i = I(); i.txt = t; i.op = op; i.line = ln; i.w = []; i.r = []; i.kind = "other"; i.passes = 0; i.cread = []; i.nop = 1; i.target = None
    if op == "s_nop": i.nop = int(ops[0]) + 1; i.kind = "nop"; return i
    if op.startswith("s_cbranch") or op == "s_branch": i.kind = "branch"; i.target = ops[0];
    if op.startswith("v_mfma"):
        i.kind = "mfma"; i.w = regs(ops[0]); i.r = regs(ops[1]) + regs(ops[2]); i.cread = regs(ops[3]); i.r += i.cread
        i.passes = 4 if "16x16" in op else 8
        return i
    if op.startswith("v_"):
        i.kind = "valu"
        if op.startswith("v_cmp"):
            i.w = regs(ops[0]); i.r = sum((regs(x) for x in ops[1:]), [])
        elif op.startswith("v_readfirstlane") or op.startswith("v_readlane"):
            i.w = regs(ops[0]); i.r = regs(ops[1]); i.kind = "readlane"
        elif op.startswith("v_permlane"):
            i.w = regs(ops[0]) + regs(ops[1]); i.r = list(i.w); i.kind = "permlane"
        elif op.startswith("v_add_co") or op.startswith("v_addc_co") or op.startswith("v_sub_co"):
            i.w = regs(ops[0]) + regs(ops[1]); i.r = sum((regs(x) for x in ops[2:]), [])
        else:
            i.w = regs(ops[0]); i.r = sum((regs(x) for x in ops[1:]), [])
            if op.startswith(("v_fmac","v_dot2c","v_mac")): i.r += i.w
            if op.startswith("v_cndmask") and len(ops) == 3: i.r += [("s","vcc")]
            if "dpp" in op or "row_" in t: i.kind = "dpp"
            if op.startswith("v_dot2"): i.kind = "dot"
        if op.replace("_e64","").replace("_e32","") in TRANS: i.kind = "trans"
        return i
    if op.startswith("ds_"):
        i.kind = "ds"
        if op.startswith(("ds_read","ds_bpermute")): i.w = regs(ops[0]); i.r = sum((regs(x) for x in ops[1:]), [])
        else: i.r = sum((regs(x) for x in ops), [])
        return i
    if op.startswith(("buffer_","global_")):
        i.kind = "vmem"
        lds = " lds" in t
        if "load" in op and not lds and "lds" not in op:
            i.w = regs(ops[0]); i.r = sum((regs(x) for x in ops[1:]), [])
        else:
            i.r = sum((regs(x) for x in ops), [])
            if lds or "lds" in op: i.r += [("s","m0")]; i.kind = "dma"
            if "store" in op: i.kind = "store" + ("W" if ("x4" in op or "x3" in op) else "")
        return i
    if op.startswith("s_"):
        if i.kind != "branch": i.kind = "salu"
        if op.startswith(("s_cmp","s_waitcnt","s_barrier","s_endpgm","s_setprio","s_sleep","s_bitcmp")):
            i.r = sum((regs(x) for x in ops), [])
        elif i.kind == "branch":
            if "vcc" in op: i.r = [("s","vcc")]
        else:
            i.w = regs(ops[0]); i.r = sum((regs(x) for x in ops[1:]), [])
        return i
    return i
def isv(r): return r[0] in ("v","a")
def required(p, c):
    need = 0
    pw = set(p.w); cr = set(c.r); cw = set(c.w)
    valu_p = p.kind in ("valu","trans","dpp","dot","permlane","readlane")
    valu_c = c.kind in ("valu","trans","dpp","dot","permlane","readlane")
    vw = {r for r in pw if isv(r)}; sw = {r for r in pw if not isv(r)}
    if valu_p:
        if c.kind == "mfma" and vw & cr: need = max(need, 2)
        if c.kind == "dpp" and vw & cr: need = max(need, 2)
        if c.kind == "permlane" and vw & cr: need = max(need, 2)
        if c.kind == "readlane" and vw & cr: need = max(need, 1)
        if p.kind == "trans" and valu_c and c.kind != "trans" and vw & cr: need = max(need, 1)
        if p.kind == "trans" and c.kind == "trans" and vw & cr: need = max(need, 1)
        if p.kind == "dot" and (valu_c or c.kind in ("mfma","ds","vmem","store","storeW")) and (vw & (cr | cw)):
            if not (c.kind == "dot" and c.op == p.op and not (vw & (cr - cw))): need = max(need, 3)
        if sw:
            if c.kind in ("vmem","dma","store","storeW") and sw & cr: need = max(need, 5)
            if valu_c and sw & cr: need = max(need, 2)
            if ("s","exec") in sw and c.kind == "mfma": need = max(need, 4)
            if c.kind == "branch" and sw & cr: need = max(need, 1)
    if p.kind == "mfma":
        n = p.passes
        d = {4: 8, 8: 12}[n]
        if c.kind == "mfma":
            ab = cr - set(c.cread)
            if pw & ab: need = max(need, d)
            if pw & set(c.cread):
                same = (set(c.cread) == pw and c.passes == p.passes)
                if not same: need = max(need, {4: 6, 8: 10}[n])
            elif pw & cw and not (pw & set(c.cread)):
                if c.passes != p.passes: need = max(need, d)
        elif (valu_c or c.kind in ("ds","vmem","store","storeW","dma")) and (pw & (cr | cw)): need = max(need, d)
        if valu_c and set(p.cread) & {r for r in cw if isv(r)}: need = max(need, {4: 3, 8: 7}[n])
    if p.kind == "storeW" and valu_c:
        data = {r for r in p.r if isv(r)}
        if data & cw: need = max(need, 2)
    if p.kind == "salu" and ("s","m0") in pw and c.kind == "dma": need = max(need, 1)
    return need
def check(text, window=14, verbose=True):
    lines = text.split("\n")
    ins = []; labels = {}
    for ln, l in enumerate(lines):
        s = l.split(";")[0].strip()
        if s.endswith(":") and not s.startswith("."): labels[s[:-1]] = len(ins); continue
        i = parse(l, ln+1)
        if i: ins.append(i)
    problems = []
    def scan(seq):
        for b in range(1, len(seq)):
            c = seq[b]; dist = 0
            for a in range(b-1, max(-1, b-1-window), -1):
                p = seq[a]
                need = required(p, c)
                if need > dist:
                    problems.append((p.line, c.line, need, dist, p.txt, c.txt))
                dist += p.nop
                if dist >= 12: break
    seg = []
    for i in ins:
        seg.append(i)
        if i.op in ("s_branch","s_endpgm"):
            scan(seg); seg = []
    scan(seg)
    for k, i in enumerate(ins):
        if i.kind == "branch" and i.target in labels:
            t = labels[i.target]
            pre = ins[max(0,k-window):k+1]; post = ins[t:t+window]
            n0 = len(problems)
            seq = pre + post
            for b in range(len(pre), len(seq)):
                c = seq[b]; dist = 0
                for a in range(b-1, -1, -1):
                    p = seq[a]
                    need = required(p, c)
                    if a < len(pre) and need > dist: problems.append((p.line, c.line, need, dist, p.txt, c.txt))
                    dist += p.nop
                    if dist >= 12: break
    seen = set(); out = []
    for p in problems:
        if p[:2] in seen: continue
        seen.add(p[:2]); out.append(p)
    if verbose:
        for p in out[:40]:
            print(f"HAZARD need {p[2]} have {p[3]}: L{p[0]} '{p[4]}' -> L{p[1]} '{p[5]}'")
        print(f"hazard check: {len(out)} problem(s), {len(ins)} instructions")
    return out
if __name__ == "__main__":
    check(open(sys.argv[1]).read())
```

```python
S_TOK = 2048; D = 640; H = 32; DH = 20; F = 1536
KA_X=0; KA_WQ=8; KA_WK=16; KA_WV=24; KA_WO=32; KA_BX=40; KA_W1=48; KA_B1=56; KA_W2=64; KA_B2=72; KA_OUT=80; KA_DBG=88; KA_WS=96
WS_SIZE  = 268435456
WS_NONCE = 0
FSH = 7
WS_KVF   = 0x800000
WS_HFL   = 0x808000
WS_GFL   = 0x810000
WS_OFL   = 0x830000
WS_KMAX  = 0x5000
WS_KV    = 0x10000
KV_KHI   = 1024
KV_V     = 1280
V_KH     = 352
V_JJ     = 704
KV_TILE  = KV_V + 2*V_JJ
CHUNK    = 16*KV_TILE
WS_HF    = 0x80000
WS_GF    = 0x300000
WS_OF    = 0x580000
WS_DBG   = 0x1000000
ONES_SLOT = 10; ZERO_SLOT = 21
QSCALE = (20 ** -0.5) * 1.4426950408889634
def vslot(dim):
    if dim < 4: return dim
    if dim < 14: return dim + 7
    return dim - 10
L_WQ  = 0
L_WKV = 102400
L_HT  = 129024
HT_PITCH = 656
L_KV   = 0
L_RING = 86016
RING   = 16384
L_QX   = 151552
L_OA   = L_QX
L_CNT  = 161792
L_SCR  = L_CNT + 64
LDS_TOTAL = L_SCR + 256 + 64
assert L_WKV + 26*1024 <= L_HT and L_HT + 16*HT_PITCH <= L_QX and LDS_TOTAL <= 163840
CNT_READY = 0; CNT_FREE = 4; CNT_OAS = 8; CNT_M1A = 12; CNT_M1B = 16; CNT_FA = 20; CNT_RD0 = 24; CNT_WKV = 28; CNT_WQ = 32; CNT_KVF = 36; CNT_XL = 40; CNT_WQA = 44; CNT_WQB = 48; CNT_QX = 52; CNT_HT = 56; CNT_KVI = 60; CNT_X0 = CNT_KVF; CNT_GATE = CNT_KVI
SPIN_MAX = 1 << 20
```

```python
import math, struct
from asm import *
from lay2 import *

def f32(x): return "0x%08x" % struct.unpack("<I", struct.pack("<f", x))[0]
TBOUND2 = 3600.0

sWS, sI, sJ, sW, sNon, sN, sXc = 4, 8, 9, 10, 11, 12, 13
sPtr = 14
sKA = 20
SFREE = 18
STB = 64

class K:
    def __init__(self, stamps):
        self.g = Gen(); self.stamps = stamps; self.uid = 0
        self.names = {}
        self.xdiag = False
    def tag(self, p):
        self.uid += 1; return f"{p}{self.uid}"
    def stamp(self, role, name, real=False):
        if not self.stamps: return
        lst = self.names.setdefault(role, [])
        k = len(lst); assert k < 19, role
        r = STB + 2*k
        self.g(f"s_memtime s[{r}:{r+1}]" if not real else f"s_memrealtime s[{r}:{r+1}]")
        lst.append(name)
    def fork(self, role, parent, pad=None):
        if self.stamps:
            self.names[role] = list(self.names.get(parent, []))
            if pad:
                while len(self.names[role]) < pad: self.names[role].append("_")
    def dump(self, role, sT, v1, v2):
        if not self.stamps: return
        g = self.g
        self.stamp(role, "end"); self.stamp(role, "rend", real=True)
        g(f"s_lshl_b32 s{sT}, s2, 3"); g(f"s_add_u32 s{sT}, s{sT}, s{sW}"); g(f"s_lshl_b32 s{sT}, s{sT}, 7")
        g(f"s_add_u32 s{sT}, s{sT}, {WS_DBG}")
        g("s_waitcnt lgkmcnt(0)"); g("s_mov_b64 exec, 1"); g(f"v_mov_b32 v{v2}, 0")
        for i in range(len(self.names[role])):
            g(f"v_mov_b32 v{v1}, s{STB+2*i}")
            g(f"buffer_store_dword v{v1}, v{v2}, s[{sWS}:{sWS+3}], s{sT} offen offset:{4*i}")
        g("s_mov_b64 exec, -1")

def lds_signal(g, vcnt, vone, off):
    g("s_mov_b64 exec, 1"); g(f"ds_add_u32 v{vcnt}, v{vone} offset:{off}"); g("s_mov_b64 exec, -1")

def lds_spin(k, vcnt, off, vtmp, stmp, scnt, target, have=None):
    g = k.g; t = k.tag("sp")
    if have is not None:
        g(f"v_readfirstlane_b32 s{stmp}, v{have}")
        g(f"s_cmp_ge_u32 s{stmp}, {target}")
        g(f"s_cbranch_scc1 L_{t}_ok")
    if have is None and getattr(k, "spinsleep", 0):
        g(f"ds_read_b32 v{vtmp}, v{vcnt} offset:{off}")
        g("s_waitcnt lgkmcnt(0)")
        g(f"v_readfirstlane_b32 s{stmp}, v{vtmp}")
        g(f"s_cmp_ge_u32 s{stmp}, {target}")
        g(f"s_cbranch_scc1 L_{t}_ok")
    g(f"s_mov_b32 s{scnt}, 0")
    g.label(f"L_{t}")
    if getattr(k, "spinsleep", 0): g(f"s_sleep {k.spinsleep}")
    g(f"ds_read_b32 v{vtmp}, v{vcnt} offset:{off}")
    g(f"s_add_u32 s{scnt}, s{scnt}, 1")
    g("s_waitcnt lgkmcnt(0)")
    g(f"v_readfirstlane_b32 s{stmp}, v{vtmp}")
    g(f"s_cmp_ge_u32 s{scnt}, {SPIN_MAX}")
    g(f"s_cbranch_scc1 L_{t}_ok")
    g(f"s_cmp_ge_u32 s{stmp}, {target}")
    g(f"s_cbranch_scc0 L_{t}")
    g.label(f"L_{t}_ok")

def poll_flags(k, voff, soff, vF, n, scnt, sleep=1):
    g = k.g; t = k.tag("pf")
    g(f"s_mov_b32 s{scnt}, 0")
    g.label(f"L_{t}")
    op = "buffer_load_dword" if n == 1 else "buffer_load_dwordx4"
    g(f"{op} {V(vF,n)}, v{voff}, {S(sWS,4)}, {soff} offen sc1")
    g(f"s_add_u32 s{scnt}, s{scnt}, 1")
    g("s_waitcnt vmcnt(0)")
    g(f"v_cmp_ne_u32 vcc, s{sNon}, v{vF}")
    for r in range(1, n):
        g(f"v_xor_b32 v{vF+r}, s{sNon}, v{vF+r}")
    if n == 4:
        g(f"v_or3_b32 v{vF+1}, v{vF+1}, v{vF+2}, v{vF+3}")
        g(f"v_cmp_ne_u32 s[{SFREE}:{SFREE+1}], 0, v{vF+1}")
        g("s_nop 1")
        g(f"s_or_b64 vcc, vcc, s[{SFREE}:{SFREE+1}]")
    g(f"s_cmp_ge_u32 s{scnt}, {SPIN_MAX >> 4}")
    g(f"s_cbranch_scc1 L_{t}_ok")
    g("s_nop 1")
    g(f"s_cbranch_vccz L_{t}_ok")
    if sleep: g(f"s_sleep {sleep}")
    g(f"s_branch L_{t}")
    g.label(f"L_{t}_ok")

def poll_flags4(k, voff, soff, vF, scnt, stmp, sleep=2):
    g = k.g; t = k.tag("pf")
    g(f"s_mov_b32 s{scnt}, 0")
    g.label(f"L_{t}")
    g(f"s_mov_b32 s{stmp}, s{soff}")
    for q in range(4):
        g(f"buffer_load_dword v{vF+q}, v{voff}, {S(sWS,4)}, s{stmp} offen sc1")
        if q < 3: g(f"s_add_u32 s{stmp}, s{stmp}, {64 << FSH}")
    g(f"s_add_u32 s{scnt}, s{scnt}, 1")
    g("s_waitcnt vmcnt(0)")
    for r in range(4): g(f"v_xor_b32 v{vF+r}, s{sNon}, v{vF+r}")
    g(f"v_or3_b32 v{vF+1}, v{vF+1}, v{vF+2}, v{vF+3}")
    g(f"v_or_b32 v{vF}, v{vF}, v{vF+1}")
    g(f"v_cmp_ne_u32 vcc, 0, v{vF}")
    g(f"s_cmp_ge_u32 s{scnt}, {SPIN_MAX >> 4}")
    g(f"s_cbranch_scc1 L_{t}_ok")
    g("s_nop 1")
    g(f"s_cbranch_vccz L_{t}_ok")
    if sleep: g(f"s_sleep {sleep}")
    g(f"s_branch L_{t}")
    g.label(f"L_{t}_ok")

def flag4_addr(g, sD, sT, base, pack4):
    g(f"s_lshl_b32 s{sD}, s{sI}, 3"); g(f"s_add_u32 s{sD}, s{sD}, s{sJ}")
    if pack4:
        g(f"s_and_b32 s{sT}, s{sD}, 3"); g(f"s_lshl_b32 s{sT}, s{sT}, 2")
        g(f"s_lshr_b32 s{sD}, s{sD}, 2"); g(f"s_lshl_b32 s{sD}, s{sD}, {FSH}"); g(f"s_add_u32 s{sD}, s{sD}, s{sT}")
    else:
        g(f"s_lshl_b32 s{sD}, s{sD}, {FSH}")
    g(f"s_add_u32 s{sD}, s{sD}, {base}")

def write_flag(g, soff, vtmp, vzero):
    g(f"v_mov_b32 v{vtmp}, s{sNon}")
    g(f"v_mov_b32 v{vzero}, 0")
    g("s_mov_b64 exec, 1")
    g(f"buffer_store_dword v{vtmp}, v{vzero}, {S(sWS,4)}, s{soff} offen sc1")
    g("s_mov_b64 exec, -1")

def nonce_hash(g):
    g(f"s_mov_b32 s{SFREE}, s{sNon}")
    g(f"s_xor_b32 s{sNon}, s{sNon}, 0x5bd1e995")
    g(f"s_mul_i32 s{sNon}, s{sNon}, 0x9e3779b1")
    g(f"s_add_u32 s{sNon}, s{sNon}, 0x7f4a7c15")
    g(f"s_cmp_eq_u32 s{sNon}, s{SFREE}")
    g(f"s_addc_u32 s{sNon}, s{sNon}, 0")

def srd(g, dst, lo, hi, nbytes):
    g(f"s_mov_b32 s{dst}, s{lo}"); g(f"s_and_b32 s{dst+1}, s{hi}, 0xffff")
    g(f"s_mov_b32 s{dst+2}, 0x{nbytes:x}"); g(f"s_mov_b32 s{dst+3}, 0x20000")

def xreduce(g, reg, vt, op, which=(16, 32)):
    for wd in which:
        g(f"v_mov_b32 v{vt}, v{reg}"); g.nop(2)
        g(f"v_permlane{wd}_swap_b32 v{reg}, v{vt}"); g.nop(1)
        g(f"{op} v{reg}, v{reg}, v{vt}")

def phase_p(k, xrot=False, w1probe=1, wqdelay=1, xprobe=1, wqprobe=1, qpat=0, ksleep=2, prog=1):
    g = k.g
    va = Alloc(1, 255, "v"); sa = Alloc(sKA+12, STB, "s")
    sX = sa(4); sTg = sa(); sKs = sa(); sXoff = sa(); sT0 = sa(); sT1 = sa(); sT2 = sa(); sTile = sa(); sSc = sa(); sRot = sa(); sKi = sa(); sWrapK = sa(); sIncK = sa()
    vT = va(); vG = va(); vXo = va(); vTmp = va(); vTmp2 = va(); vTmp3 = va(); vL16 = va(); vCn = va(); vOn = va()
    X = va(80, 4)
    vS = va(2, 2); vQ = va(2, 2); vRS = va(2, 2); vNB = va(2, 2); vR2 = va(); vP = va(8, 2)
    base = va.p
    if k.early:
        g(f"s_cmp_ge_u32 s{sW}, 6"); g("s_cbranch_scc1 L_dma")
        g(f"s_cmp_eq_u32 s{sW}, 4"); g("s_cbranch_scc1 L_dma")
    sXq = [sa() for _ in range(4)]
    g(f"v_and_b32 v{vT}, 15, v0")
    g(f"v_lshrrev_b32 v{vG}, 4, v0")
    g(f"s_lshr_b32 s{sTg}, s{sJ}, 1")
    g(f"s_cmp_lt_u32 s{sW}, 4")
    g(f"s_cselect_b32 s{sT0}, s{sW}, s{sTg}")
    g(f"s_lshl_b32 s{sKs}, s{sI}, 2")
    g(f"s_add_u32 s{sKs}, s{sKs}, s{sT0}")
    g(f"s_mul_i32 s{sXoff}, s{sKs}, {16*1280}")
    g(f"v_mul_u32_u24 v{vXo}, 1280, v{vT}")
    g(f"v_lshl_add_u32 v{vXo}, v{vG}, 4, v{vXo}")
    g(f"v_mov_b32 v{vCn}, {L_CNT}"); g(f"v_mov_b32 v{vOn}, 1")
    g(f"s_and_b32 s{sRot}, s{sI}, 3"); g(f"s_mul_i32 s{sRot}, s{sRot}, {5 if prog else 0}")
    g(f"s_cmp_eq_u32 s{sW}, 5"); g(f"s_cselect_b32 s{sRot}, 0, s{sRot}")
    g(f"s_lshl_b32 s{sXq[0]}, s{sRot}, 6"); g(f"s_add_u32 s{sXq[0]}, s{sXq[0]}, s{sXoff}")
    for q in range(1, 4):
        g(f"s_add_u32 s{sXq[q]}, s{sRot}, {5*q}"); g(f"s_cmp_ge_u32 s{sXq[q]}, 20")
        g(f"s_cselect_b32 s{sXq[q]}, 1280, 0"); g(f"s_sub_u32 s{sXq[q]}, s{sXq[0]}, s{sXq[q]}")
    g("s_waitcnt lgkmcnt(0)")
    if not k.early: g("s_barrier")
    k.stamp("A", "bar0")
    srd(g, sX, sKA, sKA+1, S_TOK*D*2)
    g(f"s_cmp_ge_u32 s{sW}, 4"); g("s_cbranch_scc1 L_other")
    def xloads():
        for m in range(20):
            g(f"buffer_load_dwordx4 {V(X+4*m,4)}, v{vXo}, {S(sX,4)}, s{sXq[m//5]} offen offset:{64*m}")
    if k.kvfirst:
        g(f"s_cmp_lg_u32 s{sW}, s{sTg}"); g("s_cbranch_scc1 L_pre")
        if k.kvself:
            sKV0 = sa(4)
            g(f"s_and_b32 s{sT0}, s{sJ}, 1"); g(f"s_cmp_eq_u32 s{sT0}, 1")
            g(f"s_cselect_b32 s{sKV0}, s{sKA+6}, s{sKA+4}")
            g(f"s_cselect_b32 s{sKV0+1}, s{sKA+7}, s{sKA+5}")
            g(f"s_and_b32 s{sKV0+1}, s{sKV0+1}, 0xffff")
            g(f"s_mov_b32 s{sKV0+2}, {D*DH*2}"); g(f"s_mov_b32 s{sKV0+3}, 0x20000")
            g(f"v_lshlrev_b32 v{vL16}, 4, v0")
            xloads()
            g(f"s_mov_b32 s{sT0}, 0")
            for n in range(25):
                g(f"s_mov_b32 m0, {L_WKV + n*1024}")
                if n: g(f"s_add_u32 s{sT0}, s{sT0}, 1024")
                else: g("s_nop 0")
                g(f"buffer_load_dwordx4 v{vL16}, {S(sKV0,4)}, s{sT0} offen lds")
            lds_signal(g, vCn, vOn, CNT_KVI)
        else:
            xloads()
        g.label("L_pre")
    else:
        g.label("L_xload")
        xloads()
    srd(g, sWS, sPtr, sPtr+1, WS_SIZE)
    if not k.kvfirst: g(f"s_cmp_eq_u32 s{sW}, 5"); g("s_cbranch_scc1 L_nonce_done")
    g(f"s_load_dword s{sNon}, {S(sPtr,2)}, {WS_NONCE}")
    g.label("L_nonce_done")
    g(f"v_lshlrev_b32 v{vL16}, 4, v0")
    if not k.kvfirst: k.stamp("A", "xissued")
    ra = Alloc(base, 255, "v")
    vTrQ0 = ra(); vTrQ1 = ra(); vQd = [ra() for _ in range(5)]
    AB = [ra(20, 4), ra(20, 4)]; accQ = ra(20, 4)
    vTrKV = ra(); vTT = ra(); accKV = ra(8, 4); vZ = ra(4, 4)
    KB = [AB[0] + 8*q for q in range(k.kvpd + 1)]
    r1 = Alloc(base, 255, "v")
    vHw = r1(); vHr = r1(); HB = [r1(4, 4) for _ in range(4)]; vRS2 = r1(2, 2); vNB2 = r1(2, 2)
    g(f"v_bfe_u32 v{vTmp}, v0, 2, 2")
    g(f"v_and_b32 v{vTmp2}, 3, v0")
    if not k.kvfirst: g(f"s_cmp_eq_u32 s{sW}, 5"); g("s_cbranch_scc1 L_stats")
    g(f"v_lshl_add_u32 v{vTmp3}, v{vG}, 2, v{vTmp}")
    g(f"v_mul_u32_u24 v{vTrQ0}, 160, v{vTmp3}")
    g(f"v_lshl_add_u32 v{vTrQ0}, v{vTmp2}, 3, v{vTrQ0}")
    g(f"v_add_u32 v{vTrQ1}, 51200, v{vTrQ0}")
    g(f"v_lshl_add_u32 v{vTmp3}, v{vG}, 3, v{vTmp}")
    g(f"v_mul_u32_u24 v{vTrKV}, 40, v{vTmp3}")
    g(f"v_lshl_add_u32 v{vTrKV}, v{vTmp2}, 3, v{vTrKV}")
    g(f"v_add_u32 v{vTrKV}, {L_WKV}, v{vTrKV}")
    g(f"s_and_b32 s{sT1}, s{sW}, 1"); g(f"s_lshl_b32 s{sT1}, s{sT1}, 4")
    g(f"v_add_u32 v{vTT}, s{sT1}, v{vT}")
    g(f"s_lshr_b32 s{sTile}, s{sKs}, 1")
    g(f"s_mul_i32 s{sTile}, s{sTile}, {KV_TILE}")
    g(f"s_add_u32 s{sTile}, s{sTile}, {WS_KV}")
    g(f"s_lshr_b32 s{sT1}, s{sW}, 1"); g(f"s_mul_i32 s{sT1}, s{sT1}, 1280"); g(f"s_add_u32 s{sT1}, s{sT1}, {L_QX}")
    for ct in range(5):
        g(f"v_add_u32 v{vTmp}, {4*ct}, v{vG}")
        g(f"v_mul_u32_u24 v{vTmp2}, 52, v{vTmp}")
        g(f"v_lshrrev_b32 v{vTmp2}, 8, v{vTmp2}")
        g(f"v_mul_u32_u24 v{vTmp3}, 5, v{vTmp2}")
        g(f"v_sub_u32 v{vTmp}, v{vTmp}, v{vTmp3}")
        g(f"v_mul_u32_u24 v{vQd[ct]}, 2560, v{vTmp2}")
        g(f"v_lshrrev_b32 v{vTmp2}, 1, v{vTmp}")
        g(f"v_lshlrev_b32 v{vTmp2}, 9, v{vTmp2}")
        g(f"v_lshl_add_u32 v{vTmp2}, v{vTT}, 4, v{vTmp2}")
        g(f"v_and_b32 v{vTmp3}, 1, v{vTmp}")
        g(f"v_lshl_add_u32 v{vTmp2}, v{vTmp3}, 3, v{vTmp2}")
        g(f"v_lshlrev_b32 v{vTmp3}, 3, v{vTT}")
        g(f"v_add_u32 v{vTmp3}, 1024, v{vTmp3}")
        g(f"v_cmp_eq_u32 vcc, 4, v{vTmp}")
        g(f"v_add_u32 v{vQd[ct]}, s{sT1}, v{vQd[ct]}")
        g("s_nop 0")
        g(f"v_cndmask_b32 v{vTmp2}, v{vTmp2}, v{vTmp3}, vcc")
        g(f"v_add_u32 v{vQd[ct]}, v{vQd[ct]}, v{vTmp2}")
    if k.kvfirst:
        g(f"s_cmp_eq_u32 s{sW}, s{sTg}"); g("s_cbranch_scc1 L_stats0")
        if k.stage: lds_spin(k, vCn, CNT_X0, vTmp, sT0, sT1, 1)
        g.label("L_xload")
        xloads()
        g(f"v_lshlrev_b32 v{vL16}, 4, v0")
        if k.early:
            g(f"s_cmp_eq_u32 s{sW}, 5"); g("s_cbranch_scc1 L_stats1")
        g.label("L_stats0")
        if k.early:
            g("s_barrier")
            g.label("L_stats1")
        k.stamp("A", "xissued")
    g.label("L_stats")
    for r in (vS, vS+1, vQ, vQ+1): g(f"v_mov_b32 v{r}, 0")
    if k.kvself:
        g(f"s_cmp_eq_u32 s{sW}, s{sTg}"); g("s_cbranch_scc1 L_xw_kv")
        g("s_waitcnt vmcnt(0)"); g("s_branch L_xw_done")
        g.label("L_xw_kv"); g("s_waitcnt vmcnt(25)")
        g.label("L_xw_done")
    for m in range(20):
        if not k.kvself: g(f"s_waitcnt vmcnt({19-m})")
        if k.xdiag and m in (0, 9): k.stamp("A", f"x{m}")
        for r in range(4):
            g(f"v_dot2c_f32_bf16 v{vS+(r&1)}, 0x3f803f80, v{X+4*m+r}")
            g(f"v_dot2c_f32_bf16 v{vQ+(r&1)}, v{X+4*m+r}, v{X+4*m+r}")
    k.stamp("A", "xland")
    g(f"s_cmp_eq_u32 s{sW}, 5"); g("s_cbranch_scc1 L_nosig")
    lds_signal(g, vCn, vOn, CNT_XL)
    if k.stage or k.hx0:
        g(f"s_cmp_lg_u32 s{sW}, s{sTg}"); g("s_cbranch_scc1 L_nosig")
        lds_signal(g, vCn, vOn, CNT_X0)
    g.label("L_nosig")
    g.nop(1)
    g(f"v_add_f32 v{vS}, v{vS}, v{vS+1}")
    g(f"v_add_f32 v{vQ}, v{vQ}, v{vQ+1}")
    xreduce(g, vS, vTmp, "v_add_f32"); xreduce(g, vQ, vTmp, "v_add_f32")
    g(f"v_mul_f32 v{vS}, {f32(1/640)}, v{vS}")
    g(f"v_mul_f32 v{vQ}, {f32(1/640)}, v{vQ}")
    g(f"v_fma_f32 v{vQ}, -v{vS}, v{vS}, v{vQ}")
    g(f"v_max_f32 v{vQ}, 0, v{vQ}")
    g(f"v_add_f32 v{vTmp}, {f32(1e-5)}, v{vQ}")
    g(f"v_rsq_f32 v{vRS}, v{vTmp}"); g.nop(1)
    g(f"v_mul_f32 v{vNB}, v{vS}, v{vRS}")
    g(f"v_sub_f32 v{vNB}, 0, v{vNB}")
    g(f"s_cmp_eq_u32 s{sW}, 5"); g("s_cbranch_scc1 L_h")
    for kk in range(0, 80, 4):
        for r in range(4):
            g(f"v_lshlrev_b32 v{vP+2*r}, 16, v{X+kk+r}")
            g(f"v_and_b32 v{vP+2*r+1}, 0xffff0000, v{X+kk+r}")
        for r in range(4):
            g(f"v_pk_fma_f32 {V(vP+2*r,2)}, {V(vP+2*r,2)}, {V(vRS,2)}, {V(vNB,2)} op_sel_hi:[1,0,0]")
        for r in range(4):
            g(f"v_cvt_pk_bf16_f32 v{X+kk+r}, v{vP+2*r}, v{vP+2*r+1}")
    k.stamp("A", "normed")
    g("s_waitcnt lgkmcnt(0)")
    nonce_hash(g)
    k.fork("G1", "A")
    g(f"s_cmp_lg_u32 s{sW}, s{sTg}"); g("s_cbranch_scc1 L_q")
    g("s_setprio 3")
    if k.kvself: g("s_waitcnt vmcnt(0)")
    else: lds_spin(k, vCn, CNT_WKV, vTmp, sT0, sT1, 3)
    for r in range(8): g(f"v_mov_b32 v{accKV+r}, 0")
    g(f"s_mul_i32 s{sT0}, s{sRot}, 1280"); g(f"v_add_u32 v{vTrKV}, s{sT0}, v{vTrKV}")
    g(f"s_mov_b32 s{sKi}, s{sRot}")
    def rdkv(m):
        b = KB[m % len(KB)]
        L = [f"ds_read_b64_tr_b16 {V(b+4*tile+2*t,2)}, v{vTrKV} offset:{t*160 + tile*32}" for tile in range(2) for t in range(2)]
        L += [f"s_add_u32 s{sKi}, s{sKi}, 1", f"s_cmp_eq_u32 s{sKi}, 20", f"s_cselect_b32 s{sT0}, s{sWrapK}, s{sIncK}",
              f"s_cselect_b32 s{sKi}, 0, s{sKi}", f"v_add_u32 v{vTrKV}, s{sT0}, v{vTrKV}"]
        return L
    g(f"s_mov_b32 s{sWrapK}, {(-19*1280) & 0xffffffff}"); g(f"s_mov_b32 s{sIncK}, 1280")
    g(f"s_and_b32 s{sT0}, s{sJ}, 1")
    g(f"s_cmp_eq_u32 s{sT0}, 1")
    g("s_cbranch_scc1 L_v")
    for which in ("K", "V"):
        if which == "V": g.label("L_v")
        PD = k.kvpd
        for mm in range(PD):
            for x in rdkv(mm): g(x)
        for m in range(20):
            b = KB[m % len(KB)]
            nx = rdkv(m+PD) if m + PD < 20 else []
            for x in nx: g(x)
            g(f"s_waitcnt lgkmcnt({4*min(PD, 19-m)})")
            for tile in range(2):
                if which == "K": g(f"v_mfma_f32_16x16x32_bf16 {V(accKV+4*tile,4)}, {V(b+4*tile,4)}, {V(X+4*m,4)}, {V(accKV+4*tile,4)}")
                else:            g(f"v_mfma_f32_16x16x32_bf16 {V(accKV+4*tile,4)}, {V(X+4*m,4)}, {V(b+4*tile,4)}, {V(accKV+4*tile,4)}")
        g.nop(8)
        b = KB[0]
        for tile in range(2):
            g(f"v_cvt_pk_bf16_f32 v{b+2*tile}, v{accKV+4*tile}, v{accKV+4*tile+1}")
            g(f"v_cvt_pk_bf16_f32 v{b+2*tile+1}, v{accKV+4*tile+2}, v{accKV+4*tile+3}")
        if which == "K":
            g(f"v_lshrrev_b32 v{vTmp}, 1, v{vG}")
            g(f"v_lshlrev_b32 v{vTmp}, 9, v{vTmp}")
            g(f"v_lshl_add_u32 v{vTmp}, v{vTT}, 4, v{vTmp}")
            g(f"v_and_b32 v{vTmp2}, 1, v{vG}")
            g(f"v_lshl_add_u32 v{vTmp}, v{vTmp2}, 3, v{vTmp}")
            g(f"buffer_store_dwordx2 {V(b,2)}, v{vTmp}, {S(sWS,4)}, s{sTile} offen sc1")
            g(f"v_lshlrev_b32 v{vTmp2}, 3, v{vTT}")
            g("s_mov_b64 exec, 0xffff")
            g(f"buffer_store_dwordx2 {V(b+2,2)}, v{vTmp2}, {S(sWS,4)}, s{sTile} offen offset:{KV_KHI} sc1")
            g("s_mov_b64 exec, -1")
            g(f"v_mul_f32 v{vS}, v{accKV}, v{accKV}")
            for r in range(1, 4): g(f"v_fmac_f32 v{vS}, v{accKV+r}, v{accKV+r}")
            g(f"v_mul_f32 v{vQ}, v{accKV+4}, v{accKV+4}")
            for r in range(1, 4): g(f"v_fmac_f32 v{vQ}, v{accKV+4+r}, v{accKV+4+r}")
            g(f"v_cmp_eq_u32 vcc, 0, v{vG}"); g.nop(2)
            g(f"v_cndmask_b32 v{vQ}, 0, v{vQ}, vcc")
            g(f"v_add_f32 v{vS}, v{vS}, v{vQ}")
            xreduce(g, vS, vTmp3, "v_add_f32")
            for rot in (8, 4, 2, 1):
                g.nop(2); g(f"v_max_f32_dpp v{vS}, v{vS}, v{vS} row_ror:{rot} row_mask:0xf bank_mask:0xf")
            g(f"s_lshl_b32 s{sT1}, s{sKs}, 2"); g(f"s_add_u32 s{sT1}, s{sT1}, {WS_KMAX}")
            g(f"v_mov_b32 v{vTmp3}, 0")
            g("s_mov_b64 exec, 1")
            g(f"buffer_store_dword v{vS}, v{vTmp3}, {S(sWS,4)}, s{sT1} offen sc1")
            g("s_mov_b64 exec, -1")
            g("s_branch L_kv_pub")
        else:
            g(f"s_and_b32 s{sT1}, s{sTg}, 1"); g(f"s_mul_i32 s{sT1}, s{sT1}, {V_JJ}")
            g(f"s_add_u32 s{sT1}, s{sT1}, s{sTile}"); g(f"s_add_u32 s{sT1}, s{sT1}, {KV_V}")
            g(f"v_and_b32 v{vTmp2}, 1, v{vG}")
            g(f"v_mul_u32_u24 v{vTmp2}, {V_KH}, v{vTmp2}")
            g(f"v_lshrrev_b32 v{vTmp3}, 1, v{vG}")
            g(f"v_lshl_add_u32 v{vTmp2}, v{vTmp3}, 3, v{vTmp2}")
            g(f"v_add_u32 v{vTmp}, 7, v{vT}")
            g(f"v_cmp_gt_u32 vcc, 4, v{vT}"); g.nop(2)
            g(f"v_cndmask_b32 v{vTmp}, v{vTmp}, v{vT}, vcc")
            g(f"v_subrev_u32 v{vTmp3}, 10, v{vT}")
            g(f"v_cmp_le_u32 vcc, 14, v{vT}"); g.nop(2)
            g(f"v_cndmask_b32 v{vTmp}, v{vTmp}, v{vTmp3}, vcc")
            g(f"v_lshl_add_u32 v{vTmp}, v{vTmp}, 4, v{vTmp2}")
            g(f"buffer_store_dwordx2 {V(b,2)}, v{vTmp}, {S(sWS,4)}, s{sT1} offen sc1")
            g(f"v_add_u32 v{vTmp3}, 6, v{vT}")
            g(f"v_lshl_add_u32 v{vTmp3}, v{vTmp3}, 4, v{vTmp2}")
            g("s_mov_b32 exec_lo, 0x000f000f"); g("s_mov_b32 exec_hi, 0x000f000f")
            g(f"buffer_store_dwordx2 {V(b+2,2)}, v{vTmp3}, {S(sWS,4)}, s{sT1} offen sc1")
            g("s_mov_b64 exec, -1")
            g(f"v_and_b32 v{vTmp}, 1, v0")
            g(f"v_mul_u32_u24 v{vTmp}, {V_KH}, v{vTmp}")
            g(f"v_bfe_u32 v{vTmp2}, v0, 1, 1")
            g(f"v_mul_u32_u24 v{vTmp3}, {(ZERO_SLOT-ONES_SLOT)*16}, v{vTmp2}")
            g(f"v_add_u32 v{vTmp}, v{vTmp}, v{vTmp3}")
            g(f"v_subrev_u32 v{vTmp2}, 1, v{vTmp2}")
            g(f"v_and_b32 v{vZ}, 0x3f803f80, v{vTmp2}")
            for r in range(1, 4): g(f"v_mov_b32 v{vZ+r}, v{vZ}")
            g("s_mov_b64 exec, 15")
            g(f"buffer_store_dwordx4 {V(vZ,4)}, v{vTmp}, {S(sWS,4)}, s{sT1} offen offset:{ONES_SLOT*16} sc1")
            g("s_mov_b64 exec, -1")
    g.label("L_kv_pub")
    flag4_addr(g, sT0, sT1, WS_KVF, k.pack4)
    g("s_waitcnt vmcnt(0)")
    write_flag(g, sT0, vTmp, vTmp2)
    g("s_setprio 0")
    g.label("L_q")
    if not k.xdiag: k.stamp("A", "kvpub")
    lds_spin(k, vCn, CNT_WQA if prog else CNT_WQ, vTmp, sT0, sT1, 3)
    k.stamp("A", "wqrdy")
    for r in range(20): g(f"v_mov_b32 v{accQ+r}, 0")
    def rdq(m):
        b = AB[m & 1]; bs = vTrQ0 if m < 10 else vTrQ1; mo = (m % 10)*5120
        return [f"ds_read_b64_tr_b16 {V(b+4*ct+2*t,2)}, v{bs} offset:{mo + t*2560 + ct*32}" for ct in range(5) for t in range(2)]
    for x in rdq(0): g(x)
    for m in range(20):
        b = AB[m & 1]
        nx = rdq(m+1) if m < 19 else []
        if prog and m + 1 in (9, 15):
            g("s_waitcnt lgkmcnt(0)")
            lds_spin(k, vCn, CNT_WQB if m + 1 == 9 else CNT_WQ, vTmp, sT0, sT1, 3)
        if qpat == 0:
            for x in nx: g(x)
            g(f"s_waitcnt lgkmcnt({10 if nx else 0})")
            for ct in range(5):
                g(f"v_mfma_f32_16x16x32_bf16 {V(accQ+4*ct,4)}, {V(b+4*ct,4)}, {V(X+4*m,4)}, {V(accQ+4*ct,4)}")
        else:
            for x in nx[:4]: g(x)
            g(f"s_waitcnt lgkmcnt({4 if nx else 0})")
            for ct in range(5):
                g(f"v_mfma_f32_16x16x32_bf16 {V(accQ+4*ct,4)}, {V(b+4*ct,4)}, {V(X+4*m,4)}, {V(accQ+4*ct,4)}")
                if ct < 3:
                    for x in nx[4+2*ct:6+2*ct]: g(x)
    g(f"s_mov_b32 s{sSc}, {f32(QSCALE)}")
    g.nop(7)
    b = AB[0]
    for ct in range(5):
        for r in range(4): g(f"v_mul_f32 v{accQ+4*ct+r}, s{sSc}, v{accQ+4*ct+r}")
        g(f"v_cvt_pk_bf16_f32 v{b+2*ct}, v{accQ+4*ct}, v{accQ+4*ct+1}")
        g(f"v_cvt_pk_bf16_f32 v{b+2*ct+1}, v{accQ+4*ct+2}, v{accQ+4*ct+3}")
        g(f"ds_write_b64 v{vQd[ct]}, {V(b+2*ct,2)}")
    g("s_waitcnt lgkmcnt(0)")
    k.stamp("A", "qdone")
    if k.nobar:
        lds_signal(g, vCn, vOn, CNT_QX)
        lds_spin(k, vCn, CNT_QX, vTmp, sT0, sT1, 4)
    else:
        g("s_barrier")
    g("s_branch L_attn")
    g.label("L_other")
    srd(g, sWS, sPtr, sPtr+1, WS_SIZE)
    g(f"s_load_dword s{sNon}, {S(sPtr,2)}, {WS_NONCE}")
    if not k.early: g(f"s_cmp_lg_u32 s{sW}, 5"); g("s_cbranch_scc1 L_dma")
    g.label("L_hwait")
    if k.early: g("s_barrier")
    if k.hprio: g(f"s_setprio {k.hprio}")
    if k.stage == 2 or k.hx0: lds_spin(k, vCn, CNT_X0, vTmp, sT0, sT1, 1)
    elif k.hwait: lds_spin(k, vCn, CNT_XL, vTmp, sT0, sT1, k.hwait)
    g("s_branch L_xload")
    g.label("L_h")
    if k.stamps: k.names["G1"] = k.names["G1"][:(7 if k.xdiag else 5)] + ([] if k.xdiag else ["_"])
    g(f"v_mul_f32 v{vTmp}, v{vRS}, v{vRS}")
    g(f"v_mul_f32 v{vTmp}, v{vTmp}, v{vQ}")
    g(f"v_add_f32 v{vTmp}, {f32(1e-5)}, v{vTmp}")
    g(f"v_rsq_f32 v{vR2}, v{vTmp}")
    g(f"v_bfe_u32 v{vTmp}, v0, 2, 2"); g(f"v_and_b32 v{vTmp2}, 3, v0")
    g(f"v_mul_f32 v{vRS2}, v{vRS}, v{vR2}")
    g(f"v_mul_f32 v{vNB2}, v{vNB}, v{vR2}")
    g(f"v_mul_u32_u24 v{vHw}, {HT_PITCH}, v{vT}")
    g(f"v_lshl_add_u32 v{vHw}, v{vG}, 4, v{vHw}")
    g(f"v_add_u32 v{vHw}, {L_HT}, v{vHw}")
    g(f"v_lshrrev_b32 v{vTmp3}, 5, v0")
    g(f"v_lshl_add_u32 v{vTmp3}, v{vTmp3}, 3, v{vTmp}")
    g(f"v_mul_u32_u24 v{vHr}, {HT_PITCH}, v{vTmp3}")
    g(f"v_lshl_add_u32 v{vHr}, v{vTmp2}, 3, v{vHr}")
    g(f"v_bfe_u32 v{vTmp3}, v0, 4, 1")
    g(f"v_lshl_add_u32 v{vHr}, v{vTmp3}, 5, v{vHr}")
    g(f"v_add_u32 v{vHr}, {L_HT}, v{vHr}")
    g(f"s_and_b32 s{sT0}, s{sJ}, 1")
    g(f"s_cmp_eq_u32 s{sT0}, 1")
    g("s_cbranch_scc1 L_h1")
    for half in range(2):
        if half == 1: g.label("L_h1")
        for mm in range(10):
            reg = X + 4*(10*half + mm)
            for r in range(4):
                g(f"v_lshlrev_b32 v{vP+2*r}, 16, v{reg+r}")
                g(f"v_and_b32 v{vP+2*r+1}, 0xffff0000, v{reg+r}")
            for r in range(4):
                g(f"v_pk_fma_f32 {V(vP+2*r,2)}, {V(vP+2*r,2)}, {V(vRS2,2)}, {V(vNB2,2)} op_sel_hi:[1,0,0]")
            for r in range(4): g(f"v_cvt_pk_bf16_f32 v{reg+r}, v{vP+2*r}, v{vP+2*r+1}")
            g(f"ds_write_b128 v{vHw}, {V(reg,4)} offset:{64*mm}")
        if half == 0: g("s_branch L_h2")
    g.label("L_h2")
    g(f"s_mul_i32 s{sT0}, s{sT0}, {10*131072}")
    g(f"s_lshl_b32 s{sT1}, s{sKs}, 10")
    g(f"s_add_u32 s{sT0}, s{sT0}, s{sT1}")
    g(f"s_add_u32 s{sT0}, s{sT0}, {WS_HF}")
    g("s_waitcnt lgkmcnt(0)")
    nonce_hash(g)
    def hrd(dtl):
        b = HB[dtl % 4]
        g(f"ds_read_b64_tr_b16 {V(b,2)}, v{vHr} offset:{64*dtl}")
        g(f"ds_read_b64_tr_b16 {V(b+2,2)}, v{vHr} offset:{64*dtl + 4*HT_PITCH}")
    hrd(0); hrd(1)
    for dtl in range(10):
        if dtl + 2 < 10:
            if dtl >= 2: g("s_nop 1")
            hrd(dtl+2); g("s_waitcnt lgkmcnt(4)")
        elif dtl + 1 < 10: g("s_waitcnt lgkmcnt(2)")
        else: g("s_waitcnt lgkmcnt(0)")
        g(f"buffer_store_dwordx4 {V(HB[dtl % 4],4)}, v{vL16}, {S(sWS,4)}, s{sT0} offen sc1")
        g(f"s_add_u32 s{sT0}, s{sT0}, 131072")
    flag4_addr(g, sT0, sT1, WS_HFL, k.pack4)
    k.stamp("G1", "hst")
    if k.nobar: lds_signal(g, vCn, vOn, CNT_HT)
    elif k.hbar: g("s_barrier")
    g("s_waitcnt vmcnt(0)")
    write_flag(g, sT0, vTmp, vTmp2)
    k.stamp("G1", "hflag")
    if not k.nobar and not k.hbar: g("s_barrier")
    g("s_setprio 0")
    g("s_branch L_gemm")
    g.label("L_dma")
    if k.kvprio: g("s_setprio 2")
    da = Alloc(1, 255, "v"); ds = Alloc(sKA+12, STB, "s")
    sWQ = ds(4); sKV = ds(4); sW1 = ds(4); sU = ds(); sM = ds(); sA = ds(); sB = ds(); sC = ds(); sCt = ds()
    sP0 = None
    vWo = [da() for _ in range(5)]; vA = da(); vB = da(); vC = da(); vL = da(); vCn2 = da(); vOn2 = da()
    g(f"s_sub_u32 s{sU}, s{sW}, 5"); g(f"s_max_i32 s{sU}, s{sU}, 0")
    g(f"v_lshlrev_b32 v{vL}, 4, v0")
    g(f"v_mov_b32 v{vCn2}, {L_CNT}"); g(f"v_mov_b32 v{vOn2}, 1")
    if k.early:
        for u in range(5):
            g(f"v_add_u32 v{vA}, {64*u}, v0")
            g(f"v_mul_u32_u24 v{vB}, 52429, v{vA}")
            g(f"v_lshrrev_b32 v{vB}, 19, v{vB}")
            g(f"v_mul_u32_u24 v{vC}, 10, v{vB}")
            g(f"v_sub_u32 v{vA}, v{vA}, v{vC}")
            g(f"v_lshlrev_b32 v{vWo[u]}, 4, v{vA}")
            g(f"v_bfe_u32 v{vA}, v{vB}, 2, 2")
            g(f"v_lshlrev_b32 v{vA}, 3, v{vA}")
            g(f"v_lshrrev_b32 v{vC}, 4, v{vB}")
            g(f"v_lshl_add_u32 v{vA}, v{vC}, 2, v{vA}")
            g(f"v_and_b32 v{vC}, 3, v{vB}")
            g(f"v_add_u32 v{vA}, v{vA}, v{vC}")
            g(f"v_mul_u32_u24 v{vA}, 1280, v{vA}")
            g(f"v_add_u32 v{vWo[u]}, v{vWo[u]}, v{vA}")
        g(f"s_lshl_b32 s{sC}, s{sU}, 10")
        g("s_waitcnt lgkmcnt(0)")
        if k.stamps: k.names["G2"] = ["rstart", "start", "bar0"]
        if k.stamps: g(f"s_memtime s[{STB+4}:{STB+5}]")
        g(f"s_and_b32 s{sA}, s{sJ}, 1"); g(f"s_cmp_eq_u32 s{sA}, 1")
        g(f"s_cselect_b32 s{sKV}, s{sKA+6}, s{sKA+4}")
        g(f"s_cselect_b32 s{sKV+1}, s{sKA+7}, s{sKA+5}")
        g(f"s_and_b32 s{sKV+1}, s{sKV+1}, 0xffff")
        g(f"s_mov_b32 s{sKV+2}, {D*DH*2}"); g(f"s_mov_b32 s{sKV+3}, 0x20000")
        g(f"s_mov_b32 s{sA}, s{sC}")
        for nn in range(9):
            if nn == 8: g(f"s_cmp_lg_u32 s{sU}, 0"); g("s_cbranch_scc1 L_wkv_e")
            g(f"s_add_u32 m0, s{sC}, {L_WKV + nn*3072}")
            if nn: g(f"s_add_u32 s{sA}, s{sA}, 3072")
            else: g("s_nop 0")
            g(f"buffer_load_dwordx4 v{vL}, {S(sKV,4)}, s{sA} offen lds")
        g.label("L_wkv_e")
        g("s_barrier")
        srd(g, sWS, sPtr, sPtr+1, WS_SIZE)
        g(f"s_load_dword s{sNon}, {S(sPtr,2)}, {WS_NONCE}")
    else:
        if k.stamps: k.names["G2"] = ["rstart", "start", "bar0"]
        if not k.kvself:
            g(f"s_and_b32 s{sM}, s{sI}, 3"); g(f"s_lshl_b32 s{sM}, s{sM}, 2"); g(f"s_lshr_b32 s{sA}, s{sJ}, 1")
            g(f"s_add_u32 s{sM}, s{sM}, s{sA}"); g(f"s_lshr_b32 s{sM}, s{sM}, 1")
            g(f"s_and_b32 s{sA}, s{sJ}, 1"); g(f"s_cmp_eq_u32 s{sA}, 1")
            g(f"s_cselect_b32 s{sKV}, s{sKA+6}, s{sKA+4}")
            g(f"s_cselect_b32 s{sKV+1}, s{sKA+7}, s{sKA+5}")
            g(f"s_and_b32 s{sKV+1}, s{sKV+1}, 0xffff")
            g(f"s_mov_b32 s{sKV+2}, {D*DH*2}"); g(f"s_mov_b32 s{sKV+3}, 0x20000")
            g(f"s_mov_b32 s{sCt}, 9")
            g.label("L_wkv")
            g(f"s_mul_i32 s{sA}, s{sM}, 3"); g(f"s_add_u32 s{sA}, s{sA}, s{sU}")
            g(f"s_cmp_ge_u32 s{sA}, 25"); g("s_cbranch_scc1 L_wkv_s")
            g(f"s_lshl_b32 s{sA}, s{sA}, 10")
            g(f"s_add_u32 m0, s{sA}, {L_WKV}")
            g("s_nop 0")
            g(f"buffer_load_dwordx4 v{vL}, {S(sKV,4)}, s{sA} offen lds")
            g.label("L_wkv_s")
            g(f"s_add_u32 s{sM}, s{sM}, 1"); g(f"s_cmp_eq_u32 s{sM}, 9"); g(f"s_cselect_b32 s{sM}, 0, s{sM}")
            g(f"s_sub_u32 s{sCt}, s{sCt}, 1"); g(f"s_cmp_lg_u32 s{sCt}, 0"); g("s_cbranch_scc1 L_wkv")
            if k.kvprio: g("s_setprio 0")
        for u in range(5):
            g(f"v_add_u32 v{vA}, {64*u}, v0")
            g(f"v_mul_u32_u24 v{vB}, 52429, v{vA}")
            g(f"v_lshrrev_b32 v{vB}, 19, v{vB}")
            g(f"v_mul_u32_u24 v{vC}, 10, v{vB}")
            g(f"v_sub_u32 v{vA}, v{vA}, v{vC}")
            g(f"v_lshlrev_b32 v{vWo[u]}, 4, v{vA}")
            g(f"v_bfe_u32 v{vA}, v{vB}, 2, 2")
            g(f"v_lshlrev_b32 v{vA}, 3, v{vA}")
            g(f"v_lshrrev_b32 v{vC}, 4, v{vB}")
            g(f"v_lshl_add_u32 v{vA}, v{vC}, 2, v{vA}")
            g(f"v_and_b32 v{vC}, 3, v{vB}")
            g(f"v_add_u32 v{vA}, v{vA}, v{vC}")
            g(f"v_mul_u32_u24 v{vA}, 1280, v{vA}")
            g(f"v_add_u32 v{vWo[u]}, v{vWo[u]}, v{vA}")
    srd(g, sWQ, sKA+2, sKA+3, D*D*2)
    srd(g, sW1, sKA+8, sKA+9, S_TOK*F*2)
    g(f"s_and_b32 s{sM}, s{sI}, 3"); g(f"s_mul_i32 s{sM}, s{sM}, 5"); g(f"s_add_u32 s{sM}, s{sM}, s{sU}")
    g(f"s_mul_i32 s{sC}, s{sJ}, 160")
    sSl = ds()
    g(f"s_mov_b32 s{sSl}, s{sU}")
    def wq_block():
        g(f"s_cmp_ge_u32 s{sM}, 20"); g(f"s_cselect_b32 s{sA}, 20, 0"); g(f"s_sub_u32 s{sM}, s{sM}, s{sA}")
        g(f"s_mul_i32 s{sB}, s{sM}, 40960"); g(f"s_add_u32 s{sB}, s{sB}, s{sC}")
        if prog: g(f"s_mul_i32 s{sA}, s{sSl}, 5120")
        else:    g(f"s_mul_i32 s{sA}, s{sM}, 5120")
        for u in range(5):
            g(f"s_add_u32 m0, s{sA}, {L_WQ + u*1024}")
            g("s_nop 0")
            g(f"buffer_load_dwordx4 v{vWo[u]}, {S(sWQ,4)}, s{sB} offen lds")
        g(f"s_add_u32 s{sM}, s{sM}, 3"); g(f"s_add_u32 s{sSl}, s{sSl}, 3")
    if k.kvself: lds_spin(k, vCn2, CNT_KVI, vA, sA, sB, 1)
    if k.stage:
        g("s_waitcnt vmcnt(0)")
        lds_signal(g, vCn2, vOn2, CNT_WKV)
        lds_spin(k, vCn2, CNT_X0, vA, sA, sB, 1)
    wq_block()
    if not k.kvself and not k.stage:
        g("s_waitcnt vmcnt(5)")
    k.stamp("G2", "wkvland")
    if not k.kvself and not k.stage: lds_signal(g, vCn2, vOn2, CNT_WKV)
    g(f"s_mov_b32 s{sCt}, 4")
    g.label("L_wq")
    wq_block()
    g(f"s_sub_u32 s{sCt}, s{sCt}, 1"); g(f"s_cmp_lg_u32 s{sCt}, 0"); g("s_cbranch_scc1 L_wq")
    g("s_waitcnt vmcnt(10)")
    lds_signal(g, vCn2, vOn2, CNT_WQA)
    wq_block()
    g(f"s_cmp_eq_u32 s{sU}, 2"); g("s_cbranch_scc1 L_wq_last")
    wq_block()
    g.label("L_wq_last")
    g("s_waitcnt vmcnt(5)")
    lds_signal(g, vCn2, vOn2, CNT_WQB)
    k.stamp("G2", "dmaiss")
    g("s_waitcnt vmcnt(0) lgkmcnt(0)")
    nonce_hash(g)
    lds_signal(g, vCn2, vOn2, CNT_WQ)
    k.stamp("G2", "dmaland")
    g(f"s_lshl_b32 s{sA}, s{sN}, 6")
    g(f"v_add_u32 v{vA}, s{sA}, v0")
    g(f"v_mul_u32_u24 v{vA}, {F*2}, v{vA}")
    g(f"s_and_b32 s{sB}, s{sXc}, 3"); g(f"s_mul_i32 s{sB}, s{sB}, 768")
    g(f"s_lshl_b32 s{sA}, s{sU}, 8"); g(f"s_add_u32 s{sB}, s{sB}, s{sA}")
    for q in range(2 if w1probe else 0):
        g(f"buffer_load_dword v255, v{vA}, {S(sW1,4)}, s{sB} offen offset:{128*q}")
    if k.gpoll:
        g(f"s_cmp_lg_u32 s{sW}, 4"); g("s_cbranch_scc1 L_nopoll")
        vF4 = da(4, 4)
        g(f"v_lshlrev_b32 v{vA}, {FSH}, v0")
        g(f"s_mov_b32 s{sA}, {WS_KVF}")
        if k.pack4: poll_flags(k, vA, f"s{sA}", vF4, 4, sB, sleep=ksleep)
        else: poll_flags4(k, vA, sA, vF4, sB, sC, sleep=ksleep)
        if k.nobar: lds_signal(g, vCn2, vOn2, CNT_KVF)
        g.label("L_nopoll")
    if not k.nobar: g("s_barrier")
    g("s_branch L_gemm")

def attention(k, niter=8, pos=0, kvrot=1):
    g = k.g
    va = Alloc(1, 255, "v"); sa = Alloc(SFREE+2, STB, "s")
    QloA = va(4,4); QloB = va(4,4); QhiA = va(2,2); QhiB = va(2,2)
    KB = [(va(4,4), va(2,2)) for _ in range(2)]
    VB = [va(8,4) for _ in range(2)]
    SA = va(16,4); SB = va(16,4); PA = va(8,4); PB = va(8,4); OA = va(16,4); OB = va(16,4)
    vKlo = va(); vKhi = va(); vV = va(); vL16 = va(); vCnt = va(); vOne = va()
    vT0 = va(); vT1 = va(); vT2 = va(); vT3 = va(); vC = va(2,2); vKm = va(2,2); vF = va(4,4)
    vAd = [va() for _ in range(5)]; vSig = va()
    sT0 = sa(); sT1 = sa(); sT2 = sa(); sIt = sa(); sTgt = sa(); sQ = sa(); sDm = sa(); sInc = sa(); sSp = sa(); sIdx = sa(); sCn = sa(); sIncW = sa(); sIncN = sa()
    g.label("L_attn")
    g(f"s_mov_b32 s{sIncW}, {(-3*8*KV_TILE) & 0xffffffff}"); g(f"s_mov_b32 s{sIncN}, {8*KV_TILE}")
    g(f"v_lshlrev_b32 v{vL16}, 4, v0")
    g(f"s_mul_i32 s{sT0}, s{sW}, 2560"); g(f"s_add_u32 s{sT0}, s{sT0}, {L_QX}")
    g(f"v_add_u32 v{vT0}, s{sT0}, v{vL16}")
    g(f"v_and_b32 v{vT1}, 31, v0")
    g(f"v_lshlrev_b32 v{vT2}, 3, v{vT1}")
    g(f"v_add_u32 v{vT2}, s{sT0}, v{vT2}")
    g(f"ds_read_b128 {V(QloA,4)}, v{vT0}")
    g(f"ds_read_b128 {V(QloB,4)}, v{vT0} offset:1280")
    g(f"ds_read_b64 {V(QhiA,2)}, v{vT2} offset:1024")
    g(f"ds_read_b64 {V(QhiB,2)}, v{vT2} offset:2304")
    g(f"v_mov_b32 v{vKlo}, v{vL16}")
    g(f"v_and_b32 v{vT0}, 31, v0")
    g(f"v_lshlrev_b32 v{vKhi}, 3, v{vT0}")
    g(f"v_add_u32 v{vKhi}, {KV_KHI}, v{vKhi}")
    g(f"v_mov_b32 v{vT1}, {KV_V + ONES_SLOT*16}")
    g(f"v_cmp_le_u32 vcc, 32, v0"); g.nop(2)
    g(f"v_cndmask_b32 v{vKhi}, v{vKhi}, v{vT1}, vcc")
    g(f"v_lshrrev_b32 v{vT1}, 3, v{vT0}")
    g(f"v_and_b32 v{vT2}, 3, v{vT0}")
    g(f"v_lshl_add_u32 v{vT1}, v{vT1}, 2, v{vT2}")
    g(f"v_bfe_u32 v{vT2}, v{vT0}, 2, 1")
    g(f"v_mul_u32_u24 v{vT2}, 10, v{vT2}")
    g(f"v_add_u32 v{vT2}, v{vT2}, v{vT1}")
    g(f"v_add_u32 v{vT3}, 7, v{vT2}")
    g(f"v_cmp_gt_u32 vcc, 4, v{vT2}"); g.nop(2)
    g(f"v_cndmask_b32 v{vT3}, v{vT3}, v{vT2}, vcc")
    g(f"v_subrev_u32 v{vC}, 10, v{vT2}")
    g(f"v_cmp_le_u32 vcc, 14, v{vT2}"); g.nop(2)
    g(f"v_cndmask_b32 v{vT3}, v{vT3}, v{vC}, vcc")
    g(f"v_mov_b32 v{vC}, {ONES_SLOT}")
    g(f"v_cmp_eq_u32 vcc, 10, v{vT1}"); g.nop(2)
    g(f"v_cndmask_b32 v{vT3}, v{vT3}, v{vC}, vcc")
    g(f"v_mov_b32 v{vC}, {ZERO_SLOT}")
    g(f"v_cmp_lt_u32 vcc, 10, v{vT1}"); g.nop(2)
    g(f"v_cndmask_b32 v{vT3}, v{vT3}, v{vC}, vcc")
    g(f"v_lshrrev_b32 v{vT2}, 5, v0")
    g(f"v_mul_u32_u24 v{vT2}, {V_KH}, v{vT2}")
    g(f"v_lshl_add_u32 v{vV}, v{vT3}, 4, v{vT2}")
    g(f"v_add_u32 v{vV}, {KV_V}, v{vV}")
    g(f"v_mov_b32 v{vCnt}, {L_CNT}")
    g(f"v_mov_b32 v{vOne}, 1")
    for r in range(16): g(f"v_mov_b32 v{OA+r}, 0"); g(f"v_mov_b32 v{OB+r}, 0")
    for r in range(8): g(f"v_mov_b32 v{PB+r}, 0"); g(f"v_mov_b32 v{VB[1]+r}, 0")
    g(f"v_and_b32 v{vT0}, 31, v0")
    g(f"v_lshrrev_b32 v{vT1}, 5, v0")
    g(f"s_mul_i32 s{sT0}, s{sW}, 20")
    g(f"v_mul_u32_u24 v{vT1}, 10, v{vT1}")
    g(f"v_add_u32 v{vT1}, s{sT0}, v{vT1}")
    for u in range(5):
        g(f"v_add_u32 v{vT2}, {2*u}, v{vT1}")
        g(f"v_lshrrev_b32 v{vT3}, 3, v{vT2}")
        g(f"v_lshlrev_b32 v{vT3}, 9, v{vT3}")
        g(f"v_lshl_add_u32 v{vT3}, v{vT0}, 4, v{vT3}")
        g(f"v_and_b32 v{vT2}, 7, v{vT2}")
        g(f"v_lshl_add_u32 v{vAd[u]}, v{vT2}, 1, v{vT3}")
        g(f"v_add_u32 v{vAd[u]}, {L_OA}, v{vAd[u]}")
    g("s_waitcnt lgkmcnt(0)")
    g("s_mov_b32 exec_lo, 0")
    for r in range(2): g(f"v_mov_b32 v{QhiA+r}, 0"); g(f"v_mov_b32 v{QhiB+r}, 0")
    g("s_mov_b32 exec_lo, -1")
    g(f"v_mov_b32 v{vCnt}, {L_CNT}"); g(f"v_mov_b32 v{vOne}, 1")
    if k.nobar: lds_spin(k, vCnt, CNT_KVF, vC, sT2, sSp, 1)
    if not k.gpoll:
        g(f"v_lshlrev_b32 v{vT0}, {FSH}, v0")
        g(f"s_lshl_b32 s{sT1}, s{sW}, {6+FSH}"); g(f"s_add_u32 s{sT1}, s{sT1}, {WS_KVF}")
        poll_flags(k, vT0, f"s{sT1}", vF, 1, sCn)
        lds_signal(g, vCnt, vOne, CNT_KVF)
        lds_spin(k, vCnt, CNT_KVF, vC, sT2, sSp, 4)
    k.stamp("A", "kvflags")
    g(f"v_lshlrev_b32 v{vT0}, 3, v0")
    g(f"s_mov_b32 s{sT1}, {WS_KMAX}")
    g(f"buffer_load_dwordx2 {V(vKm,2)}, v{vT0}, {S(sWS,4)}, s{sT1} offen sc1")
    def kv_dma(c):
        if kvrot:
            t = k.tag("dm")
            g(f"s_mov_b32 s{sCn}, 11")
            g.label(f"L_{t}")
            g(f"s_lshl_b32 s{sT0}, s{sIdx}, 2"); g(f"s_add_u32 s{sT0}, s{sT0}, s{sW}")
            g(f"s_cmp_ge_u32 s{sT0}, 42"); g(f"s_cbranch_scc1 L_{t}_s")
            g(f"s_lshl_b32 s{sT0}, s{sT0}, 10")
            g(f"s_add_u32 m0, s{sT0}, {L_KV + c*CHUNK}")
            g(f"s_add_u32 s{sT1}, s{sT0}, {WS_KV + c*CHUNK}")
            g(f"buffer_load_dwordx4 v{vL16}, {S(sWS,4)}, s{sT1} offen sc1 lds")
            g.label(f"L_{t}_s")
            g(f"s_add_u32 s{sIdx}, s{sIdx}, 1"); g(f"s_cmp_eq_u32 s{sIdx}, 11"); g(f"s_cselect_b32 s{sIdx}, 0, s{sIdx}")
            g(f"s_sub_u32 s{sCn}, s{sCn}, 1"); g(f"s_cmp_lg_u32 s{sCn}, 0"); g(f"s_cbranch_scc1 L_{t}")
        else:
            t = k.tag("dm")
            g(f"s_lshl_b32 s{sT0}, s{sW}, 10"); g(f"s_add_u32 s{sT1}, s{sT0}, {WS_KV + c*CHUNK}")
            for nn in range(11):
                if nn == 10: g(f"s_cmp_ge_u32 s{sW}, 2"); g(f"s_cbranch_scc1 L_{t}")
                g(f"s_add_u32 m0, s{sT0}, {L_KV + c*CHUNK + nn*4096}")
                if nn: g(f"s_add_u32 s{sT1}, s{sT1}, 4096")
                else: g("s_nop 0")
                g(f"buffer_load_dwordx4 v{vL16}, {S(sWS,4)}, s{sT1} offen sc1 lds")
            g.label(f"L_{t}")
    g(f"s_mul_i32 s{sIdx}, s{sN}, 47"); g(f"s_lshr_b32 s{sIdx}, s{sIdx}, 9")
    g(f"s_mul_i32 s{sIdx}, s{sIdx}, 11"); g(f"s_sub_u32 s{sIdx}, s{sN}, s{sIdx}")
    kv_dma(0)
    if k.gate2 == 2: lds_signal(g, vCnt, vOne, CNT_GATE)
    kv_dma(1)
    if k.gate2 == 1: lds_signal(g, vCnt, vOne, CNT_GATE)
    if k.kvprobe:
        g(f"s_cmp_lg_u32 s{sW}, 0"); g("s_cbranch_scc1 L_att_nopr")
        g(f"s_mul_i32 s{sT0}, s{sN}, {21*128}"); g(f"s_add_u32 s{sT0}, s{sT0}, {WS_KV + 2*CHUNK}")
        g(f"v_lshlrev_b32 v{vT0}, 7, v0")
        g("s_mov_b64 exec, 0x1fffff")
        g(f"buffer_load_dword v255, v{vT0}, {S(sWS,4)}, s{sT0} offen")
        g("s_mov_b64 exec, -1")
        g.label("L_att_nopr")
    g("s_waitcnt vmcnt(20)")
    g(f"v_max_f32 v{vKm}, v{vKm}, v{vKm+1}")
    for rot in (8, 4, 2, 1):
        g.nop(2); g(f"v_max_f32_dpp v{vKm}, v{vKm}, v{vKm} row_ror:{rot} row_mask:0xf bank_mask:0xf")
    xreduce(g, vKm, vT0, "v_max_f32")
    for (lo, hi, dst) in ((QloA, QhiA, vT1), (QloB, QhiB, vT2)):
        g(f"v_mov_b32 v{dst}, 0")
        for r in range(4): g(f"v_dot2c_f32_bf16 v{dst}, v{lo+r}, v{lo+r}")
        for r in range(2): g(f"v_dot2c_f32_bf16 v{dst}, v{hi+r}, v{hi+r}")
        g.nop(3)
        xreduce(g, dst, vT0, "v_add_f32", (32,))
    g(f"v_max_f32 v{vT1}, v{vT1}, v{vT2}")
    g(f"v_mul_f32 v{vT1}, v{vT1}, v{vKm}")
    g(f"v_mov_b32 v{vT2}, {f32(TBOUND2)}")
    g(f"v_cmp_nle_f32 vcc, v{vT1}, v{vT2}")
    g.nop(5)
    g("s_cbranch_vccz L_att_fast")
    vMA = vT1; vMB = vT2
    g(f"v_mov_b32 v{vMA}, 0xff800000"); g(f"v_mov_b32 v{vMB}, 0xff800000")
    g(f"s_mov_b32 s{sT2}, {WS_KV}"); g(f"s_mov_b32 s{sIt}, 64")
    g.label("L_att_smax")
    g(f"buffer_load_dwordx4 {V(KB[0][0],4)}, v{vKlo}, {S(sWS,4)}, s{sT2} offen sc1")
    g(f"buffer_load_dwordx2 {V(KB[0][1],2)}, v{vKhi}, {S(sWS,4)}, s{sT2} offen sc1")
    g("s_waitcnt vmcnt(0)")
    g(f"v_mfma_f32_32x32x16_bf16 {V(SA,16)}, {V(KB[0][0],4)}, {V(QloA,4)}, 0")
    g(f"v_mfma_f32_32x32x16_bf16 {V(SB,16)}, {V(KB[0][0],4)}, {V(QloB,4)}, 0")
    g(f"v_mfma_f32_32x32x8_bf16 {V(SA,16)}, {V(KB[0][1],2)}, {V(QhiA,2)}, {V(SA,16)}")
    g(f"v_mfma_f32_32x32x8_bf16 {V(SB,16)}, {V(KB[0][1],2)}, {V(QhiB,2)}, {V(SB,16)}")
    g.nop(16)
    for r in range(0, 16, 2):
        g(f"v_max3_f32 v{vMA}, v{SA+r}, v{SA+r+1}, v{vMA}")
        g(f"v_max3_f32 v{vMB}, v{SB+r}, v{SB+r+1}, v{vMB}")
    g(f"s_add_u32 s{sT2}, s{sT2}, {KV_TILE}")
    g(f"s_sub_u32 s{sIt}, s{sIt}, 1"); g(f"s_cmp_lg_u32 s{sIt}, 0")
    g("s_cbranch_scc1 L_att_smax")
    for (m, hi) in ((vMA, QhiA), (vMB, QhiB)):
        xreduce(g, m, vT0, "v_max_f32", (32,))
        g(f"v_xor_b32 v{m}, 0x80000000, v{m}")
        g(f"v_and_b32 v{vT3}, 0xffff0000, v{m}")
        g(f"v_sub_f32 v{m}, v{m}, v{vT3}")
        g(f"v_and_b32 v{vC}, 0xffff0000, v{m}")
        g(f"v_sub_f32 v{m}, v{m}, v{vC}")
        g(f"v_lshrrev_b32 v{vT3}, 16, v{vT3}")
        g(f"v_or_b32 v{vT3}, v{vT3}, v{vC}")
        g(f"v_lshrrev_b32 v{m}, 16, v{m}")
        g("s_mov_b32 exec_lo, 0")
        g(f"v_mov_b32 v{hi}, v{vT3}"); g(f"v_mov_b32 v{hi+1}, v{m}")
        g("s_mov_b32 exec_lo, -1")
    g.label("L_att_fast")
    g("s_waitcnt vmcnt(10)")
    lds_signal(g, vCnt, vOne, CNT_RD0)
    lds_spin(k, vCnt, CNT_RD0, vC, sT2, sSp, 4)
    k.stamp("A", "kv0"); k.stamp("A", "rkv0", real=True)
    def rd_k(p, off):
        g(f"ds_read_b128 {V(KB[p][0],4)}, v{vKlo} offset:{off}")
        g(f"ds_read_b64 {V(KB[p][1],2)}, v{vKhi} offset:{off}")
    def rd_v(p, off):
        g(f"ds_read_b128 {V(VB[p],4)}, v{vV} offset:{off}")
        g(f"ds_read_b128 {V(VB[p]+4,4)}, v{vV} offset:{off+V_JJ}")
    def qk(Sr, Qlo, Qhi, p):
        return [f"v_mfma_f32_32x32x16_bf16 {V(Sr,16)}, {V(KB[p][0],4)}, {V(Qlo,4)}, 0",
                f"v_mfma_f32_32x32x8_bf16 {V(Sr,16)}, {V(KB[p][1],2)}, {V(Qhi,2)}, {V(Sr,16)}"]
    def pv(O, P, p):
        return [f"v_mfma_f32_32x32x16_bf16 {V(O,16)}, {V(VB[p],4)}, {V(P,4)}, {V(O,16)}",
                f"v_mfma_f32_32x32x16_bf16 {V(O,16)}, {V(VB[p]+4,4)}, {V(P+4,4)}, {V(O,16)}"]
    def ex(Sr, P):
        e = [f"v_exp_f32 v{Sr+r}, v{Sr+r}" for r in range(16)]
        c = [f"v_cvt_pk_bf16_f32 v{P+kk}, v{Sr+2*kk}, v{Sr+2*kk+1}" for kk in range(8)]
        if pos >= 7: return e, c
        seq = [e[0], e[1]]
        for kk in range(7): seq += [e[2*kk+2], c[kk], e[2*kk+3]]
        return seq, [c[7]]
    POS = {0: (5, 11, 17), 1: (3, 12, 15), 2: (3, 6, 9), 3: (4, 12, 16), 4: (4, 9, 13), 5: (4, 8, 12), 6: (5, 9, 13), 7: (3, 7, 10), 8: (3, 10, 13)}[pos]
    def phase(valu, pend, mf):
        out = []
        if pend: out += pend
        out.append(mf[0]); out += valu[0:POS[0]]; out.append(mf[1]); out += valu[POS[0]:POS[1]]; out.append(mf[2])
        out += valu[POS[1]:POS[2]]; out.append(mf[3]); out += valu[POS[2]:]
        for x in out: g(x)
    rd_k(0, 0)
    g("s_waitcnt lgkmcnt(0)")
    for x in qk(SA, QloA, QhiA, 0): g(x)
    g(f"s_mov_b32 s{sIt}, 0")
    g(f"s_mov_b32 s{sTgt}, 4")
    g(f"v_lshlrev_b32 v{vSig}, 2, v0"); g(f"v_add_u32 v{vSig}, {L_SCR}, v{vSig}")
    g(f"v_cmp_eq_u32 vcc, 0, v0"); g.nop(2)
    g(f"v_cndmask_b32 v{vSig}, v{vSig}, v{vCnt}, vcc")
    g.nop(7)
    if k.aprio: g(f"s_setprio {k.aprio}")
    g.raw(".p2align 6")
    g.label("L_att_loop")
    g(f"s_bitcmp1_b32 0x88, s{sIt}")
    g(f"s_cselect_b32 s{sInc}, s{sIncW}, s{sIncN}")
    pend = None
    for t in range(8):
        p = t % 2
        if t == 4:
            g("s_waitcnt vmcnt(0)")
            g(f"ds_add_u32 v{vSig}, v{vOne} offset:{CNT_READY}")
        if t == 5:
            g(f"s_bitcmp1_b32 {0 if k.exp_nodma else 0x14}, s{sIt}")
            g("s_cbranch_scc1 L_att_dma")
            g.label("L_att_dma_ret")
        if t == 7:
            g(f"v_readfirstlane_b32 s{sT2}, v{vC}")
            g(f"s_cmp_ge_u32 s{sT2}, s{sTgt}")
            g("s_cbranch_scc0 L_att_rdy")
            g.label("L_att_rdy_ret")
        if t == 7:
            g(f"v_add_u32 v{vKlo}, s{sInc}, v{vKlo}"); g(f"v_add_u32 v{vKhi}, s{sInc}, v{vKhi}")
            rd_k(1-p, 0)
        else:
            rd_k(1-p, (t+1)*KV_TILE)
        rd_v(p, t*KV_TILE)
        if t == 7: g(f"v_add_u32 v{vV}, s{sInc}, v{vV}")
        if t == 6: g(f"ds_read_b32 v{vC}, v{vCnt} offset:{CNT_READY}")
        va_, lastA = ex(SA, PA)
        phase(va_, pend, qk(SB, QloB, QhiB, p) + pv(OB, PB, 1-p))
        pend = lastA
        g("s_waitcnt lgkmcnt(0)")
        if t == 7: g(f"ds_add_u32 v{vSig}, v{vOne} offset:{CNT_FREE}")
        vb_, lastB = ex(SB, PB)
        phase(vb_, pend, qk(SA, QloA, QhiA, 1-p) + pv(OA, PA, p))
        pend = lastB
    g(f"s_add_u32 s{sIt}, s{sIt}, 1")
    for x in pend: g(x)
    g(f"s_add_u32 s{sTgt}, s{sTgt}, 4")
    g(f"s_cmp_lt_u32 s{sIt}, {niter}")
    g("s_cbranch_scc1 L_att_loop")
    g("s_branch L_att_fin")
    g.label("L_att_dma")
    if k.dprio: g(f"s_setprio {k.dprio}")
    g(f"s_lshl_b32 s{sDm}, s{sIt}, 2")
    lds_spin(k, vCnt, CNT_FREE, vT0, sT2, sSp, f"s{sDm}")
    g(f"s_lshr_b32 s{sT0}, s{sIt}, 1"); g(f"s_add_u32 s{sT0}, s{sT0}, 1")
    g(f"s_mul_i32 s{sDm}, s{sT0}, {CHUNK}"); g(f"s_add_u32 s{sDm}, s{sDm}, {WS_KV}")
    g(f"s_and_b32 s{sT0}, s{sT0}, 1"); g(f"s_mul_i32 s{sT2}, s{sT0}, {CHUNK}")
    g(f"s_lshl_b32 s{sT0}, s{sW}, 10")
    g(f"s_add_u32 s{sDm}, s{sDm}, s{sT0}"); g(f"s_add_u32 s{sT2}, s{sT2}, s{sT0}")
    for nn in range(10):
        g(f"s_add_u32 m0, s{sT2}, {L_KV + nn*4096}")
        if nn: g(f"s_add_u32 s{sDm}, s{sDm}, 4096")
        else: g("s_nop 0")
        g(f"buffer_load_dwordx4 v{vL16}, {S(sWS,4)}, s{sDm} offen sc1 lds")
    g(f"s_cmp_ge_u32 s{sW}, 2"); g("s_cbranch_scc1 L_att_dma_x")
    g(f"s_add_u32 m0, s{sT2}, {L_KV + 10*4096}")
    g(f"s_add_u32 s{sDm}, s{sDm}, 4096")
    g(f"buffer_load_dwordx4 v{vL16}, {S(sWS,4)}, s{sDm} offen sc1 lds")
    g.label("L_att_dma_x")
    if k.dprio: g(f"s_setprio {k.aprio}")
    g("s_branch L_att_dma_ret")
    g.label("L_att_rdy")
    lds_spin(k, vCnt, CNT_READY, vT0, sT2, sSp, f"s{sTgt}")
    g("s_branch L_att_rdy_ret")
    g.label("L_att_fin")
    k.stamp("A", "loopend"); k.stamp("A", "rloopend", real=True)
    g.nop(1)
    for x in pv(OB, PB, 1): g(x)
    g.nop(8)
    g.nop(4)
    for ss, O in ((0, OA), (1, OB)):
        g(f"v_rcp_f32 v{vT2}, v{O+10}"); g.nop(1)
        for r in range(10): g(f"v_mul_f32 v{O+r}, v{O+r}, v{vT2}")
        for u in range(5): g(f"v_cvt_pk_bf16_f32 v{O+u}, v{O+2*u}, v{O+2*u+1}")
        for u in range(5): g(f"ds_write_b32 v{vAd[u]}, v{O+u} offset:{ss*5120}")
    g("s_waitcnt lgkmcnt(0)")
    lds_signal(g, vCnt, vOne, CNT_OAS)
    lds_spin(k, vCnt, CNT_OAS, vC, sT2, sSp, 4)
    g(f"s_mul_i32 s{sQ}, s{sI}, 80"); g(f"s_mul_i32 s{sT0}, s{sJ}, 5"); g(f"s_add_u32 s{sQ}, s{sQ}, s{sT0}")
    g(f"s_lshl_b32 s{sQ}, s{sQ}, 10"); g(f"s_add_u32 s{sQ}, s{sQ}, {WS_OF}")
    g(f"s_lshl_b32 s{sT1}, s{sW}, 10")
    g(f"v_add_u32 v{vT0}, s{sT1}, v{vL16}")
    g(f"v_add_u32 v{vT0}, {L_OA}, v{vT0}")
    for nn in range(3): g(f"ds_read_b128 {V(SA+4*nn,4)}, v{vT0} offset:{4096*nn}")
    sO = [sT1, sT2, sDm]
    for nn in range(3):
        g(f"s_add_u32 s{sT0}, s{sW}, {4*nn}")
        g(f"s_cmp_ge_u32 s{sT0}, 5"); g(f"s_cselect_b32 s{sTgt}, {40960-5120}, 0")
        g(f"s_lshl_b32 s{sT0}, s{sT0}, 10"); g(f"s_add_u32 s{sT0}, s{sT0}, s{sTgt}")
        g(f"s_add_u32 s{sO[nn]}, s{sT0}, s{sQ}")
    g("s_waitcnt lgkmcnt(0)")
    for nn in range(3):
        if nn == 2: g(f"s_cmp_ge_u32 s{sW}, 2"); g("s_cbranch_scc1 L_att_st")
        g(f"buffer_store_dwordx4 {V(SA+4*nn,4)}, v{vL16}, {S(sWS,4)}, s{sO[nn]} offen sc1")
    g.label("L_att_st")
    g(f"s_lshl_b32 s{sT0}, s{sI}, 3"); g(f"s_add_u32 s{sT0}, s{sT0}, s{sJ}"); g(f"s_lshl_b32 s{sT0}, s{sT0}, 2")
    g(f"s_add_u32 s{sT0}, s{sT0}, s{sW}"); g(f"s_lshl_b32 s{sT0}, s{sT0}, {FSH}"); g(f"s_add_u32 s{sT0}, s{sT0}, {WS_OFL}")
    g("s_waitcnt vmcnt(0)")
    write_flag(g, sT0, vT0, vT1)
    k.stamp("A", "oflag")
    g(f"s_or_b32 s{sT0}, s2, s{sW}"); g(f"s_cmp_lg_u32 s{sT0}, 0"); g("s_cbranch_scc1 L_att_end")
    g(f"s_mov_b32 s{sT0}, {WS_NONCE}")
    write_flag(g, sT0, vT0, vT1)
    g.label("L_att_end")
    k.dump("A", sT0, vT0, vT1)
    g("s_endpgm")
    return va.p

def tr_addr_128(g, vdst0, vdst1, mode, vt0, vt1, vt2, s_ring):
    g(f"v_bfe_u32 v{vt0}, v0, 2, 2")
    g(f"v_lshrrev_b32 v{vt1}, 5, v0")
    g(f"v_lshlrev_b32 v{vt1}, {3 if mode=='nat' else 2}, v{vt1}")
    g(f"v_add_u32 v{vt1}, v{vt1}, v{vt0}")
    g(f"v_lshlrev_b32 v{vdst0}, 7, v{vt1}")
    g(f"v_bfe_u32 v{vt1}, v0, 4, 1")
    g(f"v_bfe_u32 v{vt2}, v0, 1, 1")
    g(f"v_lshl_add_u32 v{vt1}, v{vt1}, 1, v{vt2}")
    g(f"v_lshrrev_b32 v{vt0}, 1, v{vt0}")
    g(f"v_lshlrev_b32 v{vt0}, 2, v{vt0}")
    g(f"v_xor_b32 v{vt1}, v{vt1}, v{vt0}")
    g(f"v_lshl_add_u32 v{vdst0}, v{vt1}, 4, v{vdst0}")
    g(f"v_and_b32 v{vt2}, 1, v0")
    g(f"v_lshl_add_u32 v{vdst0}, v{vt2}, 3, v{vdst0}")
    g(f"v_add_u32 v{vdst0}, s{s_ring}, v{vdst0}")
    g(f"v_xor_b32 v{vdst1}, 64, v{vdst0}")

def dma_voff_128(g, vdst, pitch, vt0, vt1):
    g(f"v_lshrrev_b32 v{vt0}, 3, v0")
    g(f"v_bfe_u32 v{vt1}, v0, 4, 1")
    g(f"v_lshlrev_b32 v{vt1}, 2, v{vt1}")
    g(f"v_and_b32 v{vdst}, 7, v0")
    g(f"v_xor_b32 v{vdst}, v{vdst}, v{vt1}")
    g(f"v_lshlrev_b32 v{vdst}, 4, v{vdst}")
    g(f"v_mul_u32_u24 v{vt0}, {pitch}, v{vt0}")
    g(f"v_add_u32 v{vdst}, v{vdst}, v{vt0}")

def stream_gemm(k, tag, nsteps, depth, pitch, sT_srd, sTso, vTsrc, sRing, vTr, TB, mode,
                sDso, vDsrc, DR, nd, acc, tr_is_A, sCnt, first_zero=True, rot=None):
    g = k.g
    nv = 2 + nd
    toff = 512 if mode == "nat" else 1024
    def issue(slot):
        g(f"s_add_u32 m0, s{sRing}, {slot*2048}")
        g("s_nop 0")
        g(f"buffer_load_dwordx4 v{vTsrc}, {S(sT_srd,4)}, s{sTso} offen lds")
        g(f"s_add_u32 m0, s{sRing}, {slot*2048+1024}")
        g(f"s_add_u32 s{sTso}, s{sTso}, {8*pitch}")
        g(f"buffer_load_dwordx4 v{vTsrc}, {S(sT_srd,4)}, s{sTso} offen lds")
        g(f"s_add_u32 s{sTso}, s{sTso}, {8*pitch}")
        for b in range(nd):
            g(f"buffer_load_dwordx4 {V(DR+(slot*nd+b)*4,4)}, v{vDsrc[b]}, {S(sWS,4)}, s{sDso} offen sc1")
        g(f"s_add_u32 s{sDso}, s{sDso}, 1024")
        if rot:
            sPos, sA, sB = rot
            g(f"s_add_u32 s{sPos}, s{sPos}, 1"); g(f"s_cmp_eq_u32 s{sPos}, {nsteps}")
            g(f"s_cselect_b32 s{sA}, {nsteps*16*pitch}, 0"); g(f"s_cselect_b32 s{sB}, {nsteps*1024}, 0")
            g(f"s_cselect_b32 s{sPos}, 0, s{sPos}")
            g(f"s_sub_u32 s{sTso}, s{sTso}, s{sA}"); g(f"s_sub_u32 s{sDso}, s{sDso}, s{sB}")
    def trread(slot, buf):
        for a in range(2):
            for t in range(2):
                g(f"ds_read_b64_tr_b16 {V(TB[buf]+4*a+2*t,2)}, v{vTr[a]} offset:{slot*2048 + t*toff}")
    def mfmas(slot, buf, zero):
        for a in range(2):
            for b in range(nd):
                T = V(TB[buf]+4*a,4); Dd = V(DR+(slot*nd+b)*4,4); c = acc(a,b)
                A_, B_ = (T, Dd) if tr_is_A else (Dd, T)
                g(f"v_mfma_f32_32x32x16_bf16 {V(c,16)}, {A_}, {B_}, {'0' if zero else V(c,16)}")
    assert nsteps % depth == 0 and depth % 2 == 0
    for s in range(depth): issue(s)
    nit = nsteps // depth
    g(f"s_waitcnt vmcnt({nv*(depth-1)})")
    trread(0, 0)
    def body(last, first):
        for s in range(depth):
            nxt = (s+1) % depth
            if not (last and s == depth-1):
                g(f"s_waitcnt vmcnt({nv*(depth-2-s) if last else nv*(depth-2)})")
                trread(nxt, (s+1) % 2)
                g("s_waitcnt lgkmcnt(4)")
            else:
                g("s_waitcnt lgkmcnt(0)")
            mfmas(s, s % 2, first and first_zero and s == 0)
            if not last: issue(s)
    body(False, True); rem = nit - 2
    if rem > 0:
        g(f"s_mov_b32 s{sCnt}, {rem}")
        g.label(f"L_{tag}_loop")
        body(False, False)
        g(f"s_sub_u32 s{sCnt}, s{sCnt}, 1"); g(f"s_cmp_lg_u32 s{sCnt}, 0")
        g(f"s_cbranch_scc1 L_{tag}_loop")
    body(True, False)

def pk(op, d, a, b, c=None, sel=None):
    ops = [V(d,2), a, b] + ([c] if c else [])
    return f"v_pk_{op}_f32 " + ", ".join(ops) + (f" op_sel_hi:{sel}" if sel else "")

def gelu16(g, acc, vb, vt, sC2, vC1, vOnes):
    for r0 in range(0, 16, 8):
        ps = range(r0, r0+8, 2)
        for r in ps: g(pk("add", acc+r, V(acc+r,2), V(vb+r,2)))
        for r in ps: g(pk("mul", vt+r-r0, V(acc+r,2), V(acc+r,2)))
        for r in ps: g(pk("fma", vt+r-r0, V(vt+r-r0,2), S(sC2,2), V(vC1,2), "[1,0,0]"))
        for r in ps: g(pk("mul", vt+r-r0, V(vt+r-r0,2), V(acc+r,2)))
        for r in range(8): g(f"v_exp_f32 v{vt+r}, v{vt+r}")
        for r in ps: g(pk("add", vt+r-r0, V(vt+r-r0,2), V(vOnes,2), None, "[1,0]"))
        for r in range(8): g(f"v_rcp_f32 v{vt+r}, v{vt+r}")
        for r in ps: g(pk("mul", acc+r, V(acc+r,2), V(vt+r-r0,2)))

def div10(g, vq, vr, vin):
    g(f"v_mul_u32_u24 v{vq}, 52429, v{vin}"); g(f"v_lshrrev_b32 v{vq}, 19, v{vq}")
    g(f"v_mul_u32_u24 v{vr}, 10, v{vq}"); g(f"v_sub_u32 v{vr}, v{vin}, v{vr}")

def gemm_waves(k, prio=0, gate=True, eprio=0, e2prio=0, osleep=1, gsleep=1, d1=8, hsleep=2):
    g = k.g
    sa = Alloc(SFREE+2, STB, "s")
    sWa = sa(4); sWb = sa(4); sOut = sa(4); sP = sa(4); sP2 = sa(4); sP3 = sa(4); sC2 = sa(2)
    sG = sa(); sRing = sa(); sTso = sa(); sDso = sa(); sCnt = sa(); sFa = sa(); sDb = sa(); sFl = sa()
    sT0 = sa(); sT1 = sa(); sT2 = sa(); sSp = sa(); sXo = sa(); sWo = sa()
    g.label("L_gemm")
    k.spinsleep = k.gsleep2
    for r in ("G1", "G2"): k.fork(r, r, pad=8)
    if k.xdiag: k.names["G1"] = k.names["G1"][:8]
    if k.stamps: k.names["G"] = ["_"]*8
    def st(name, real=False): k.stamp("G", name, real)
    g(f"s_setprio {prio}")
    if k.gskip == 1: g("s_branch L_gdone")
    g(f"s_load_dwordx4 {S(sP,4)}, s[0:1], {KA_W1}")
    g(f"s_load_dwordx4 {S(sP2,4)}, s[0:1], {KA_W2}")
    g(f"s_load_dwordx2 {S(sP3,2)}, s[0:1], {KA_WO}")
    g(f"s_load_dwordx2 {S(sP3+2,2)}, s[0:1], {KA_X}")
    g(f"s_load_dwordx2 {S(sOut,2)}, s[0:1], {KA_OUT}")
    g(f"s_sub_u32 s{sG}, s{sW}, 4")
    g(f"s_mul_i32 s{sRing}, s{sG}, {RING}"); g(f"s_add_u32 s{sRing}, s{sRing}, {L_RING}")
    va = Alloc(1, 255, "v")
    vCnt = va(); vOne = va(); vL16 = va(); vt = va(8, 4); vWr = va(); vXo = va(); vO1 = va(); vB2 = va()
    RES = va(20, 4)
    vC1 = RES; vOnes = RES+2
    vTsrc1 = RES+4; vTr1 = [RES+5, RES+6]; vD1 = RES+7; vGst = RES+8; vRd = RES+9
    vTsrc2 = RES+10; vTr2 = [RES+11, RES+12]; vD2 = [vL16, RES+13, RES+14]; vGfl = RES+15; vW2p = RES+16
    vXr = va(10, 2); vWsrc = [va() for _ in range(5)]; vWtr = va()
    common_end = va.p
    g(f"s_mul_i32 s{sT1}, s{sN}, 43"); g(f"s_lshr_b32 s{sT1}, s{sT1}, 8")
    g(f"s_mul_i32 s{sT2}, s{sT1}, 6"); g(f"s_sub_u32 s{sFl}, s{sN}, s{sT2}")
    g(f"s_and_b32 s{sFa}, s{sXc}, 3"); g(f"s_mul_i32 s{sFa}, s{sFa}, 6"); g(f"s_add_u32 s{sFa}, s{sFa}, s{sFl}")
    g(f"s_lshr_b32 s{sDb}, s{sXc}, 2"); g(f"s_mul_i32 s{sDb}, s{sDb}, 5"); g(f"s_add_u32 s{sDb}, s{sDb}, s{sT1}")
    g(f"v_lshlrev_b32 v{vL16}, 4, v0")
    g(f"v_mov_b32 v{vCnt}, {L_CNT}"); g(f"v_mov_b32 v{vOne}, 1")
    dma_voff_128(g, vTsrc1, F*2, vt, vt+1)
    tr_addr_128(g, vTr1[0], vTr1[1], "nat", vt, vt+1, vt+2, sRing)
    g(f"v_add_u32 v{vD1}, {128*1024}, v{vL16}")
    g(f"v_add_u32 v{vWr}, s{sRing}, v{vL16}")
    g(f"s_lshl_b32 s{sT1}, s{sG}, 12"); g(f"s_add_u32 s{sT1}, s{sT1}, {L_RING}")
    g(f"v_add_u32 v{vRd}, s{sT1}, v{vL16}")
    g(f"s_and_b32 s{sT1}, s{sG}, 1"); g(f"s_lshl_b32 s{sT1}, s{sT1}, 1"); g(f"s_lshl_b32 s{sT2}, s{sDb}, 2")
    g(f"s_add_u32 s{sT1}, s{sT1}, s{sT2}")
    g(f"v_bfe_u32 v{vt}, v0, 4, 1")
    g(f"v_add_u32 v{vt}, s{sT1}, v{vt}")
    g(f"v_mul_u32_u24 v{vt+1}, 52, v{vt}")
    g(f"v_lshrrev_b32 v{vt+1}, 8, v{vt+1}")
    g(f"v_mul_u32_u24 v{vt+2}, 5, v{vt+1}")
    g(f"v_sub_u32 v{vt}, v{vt}, v{vt+2}")
    g(f"v_mul_u32_u24 v{vt+1}, 3, v{vt+1}")
    g(f"v_lshrrev_b32 v{vt+2}, 1, v{vt}")
    g(f"v_add_u32 v{vt+1}, v{vt+1}, v{vt+2}")
    g(f"v_mul_u32_u24 v{vt+1}, {96*1024}, v{vt+1}")
    g(f"v_and_b32 v{vt}, 1, v{vt}")
    g(f"v_lshlrev_b32 v{vt}, 4, v{vt}")
    g(f"v_and_b32 v{vt+2}, 15, v0")
    g(f"v_add_u32 v{vt}, v{vt}, v{vt+2}")
    g(f"v_and_b32 v{vt+2}, 32, v0")
    g(f"v_add_u32 v{vt}, v{vt}, v{vt+2}")
    g(f"v_lshl_add_u32 v{vGst}, v{vt}, 4, v{vt+1}")
    c1 = -2.0*math.sqrt(2/math.pi)*1.4426950408889634
    g(f"v_mov_b32 v{vC1}, {f32(c1)}"); g(f"v_mov_b32 v{vOnes}, 1.0")
    g(f"s_mov_b32 s{sC2}, {f32(c1*0.044715)}")
    dma_voff_128(g, vTsrc2, S_TOK*2, vt, vt+1)
    tr_addr_128(g, vTr2[0], vTr2[1], "perm", vt, vt+1, vt+2, sRing)
    g(f"v_add_u32 v{vD2[1]}, {96*1024}, v{vL16}")
    g(f"v_add_u32 v{vD2[2]}, {2*96*1024}, v{vL16}")
    g(f"v_bfe_u32 v{vt}, v0, 4, 1"); g(f"v_lshlrev_b32 v{vt}, 30, v{vt}")
    g(f"v_or_b32 v{vD2[2]}, v{vD2[2]}, v{vt}")
    g(f"v_lshlrev_b32 v{vt}, {FSH}, v0")
    g(f"v_add_u32 v{vt+1}, {72 << FSH}, v{vt}")
    g(f"v_cmp_le_u32 vcc, 24, v0"); g.nop(2)
    g(f"v_cndmask_b32 v{vGfl}, v{vt}, v{vt+1}, vcc")
    g(f"v_mov_b32 v{vt+1}, 0")
    g(f"v_cmp_le_u32 vcc, 48, v0"); g.nop(2)
    g(f"v_cndmask_b32 v{vGfl}, v{vGfl}, v{vt+1}, vcc")
    g(f"s_mul_i32 s{sT1}, s{sN}, 48"); g(f"s_lshl_b32 s{sT2}, s{sG}, 4"); g(f"s_add_u32 s{sT1}, s{sT1}, s{sT2}")
    g(f"v_lshrrev_b32 v{vt}, 2, v0"); g(f"v_add_u32 v{vt}, s{sT1}, v{vt}")
    g(f"v_lshlrev_b32 v{vt}, 12, v{vt}")
    g(f"v_and_b32 v{vt+1}, 3, v0"); g(f"v_lshl_add_u32 v{vW2p}, v{vt+1}, 7, v{vt}")
    for u in range(5):
        g(f"v_add_u32 v{vt}, {64*u}, v0")
        div10(g, vt+1, vt+2, vt)
        g(f"v_lshlrev_b32 v{vWsrc[u]}, 4, v{vt+2}")
        g(f"v_mul_u32_u24 v{vt+1}, 1280, v{vt+1}")
        g(f"v_add_u32 v{vWsrc[u]}, v{vWsrc[u]}, v{vt+1}")
    g(f"v_lshrrev_b32 v{vt}, 5, v0"); g(f"v_lshlrev_b32 v{vt}, 3, v{vt}")
    g(f"v_bfe_u32 v{vt+1}, v0, 2, 2"); g(f"v_add_u32 v{vt}, v{vt}, v{vt+1}")
    g(f"v_mul_u32_u24 v{vWtr}, 160, v{vt}")
    g(f"v_bfe_u32 v{vt+1}, v0, 4, 1"); g(f"v_lshl_add_u32 v{vWtr}, v{vt+1}, 5, v{vWtr}")
    g(f"v_and_b32 v{vt+1}, 3, v0"); g(f"v_lshl_add_u32 v{vWtr}, v{vt+1}, 3, v{vWtr}")
    g(f"v_add_u32 v{vWtr}, s{sRing}, v{vWtr}")
    g(f"v_add_u32 v{vO1}, 40960, v{vL16}")
    g(f"v_and_b32 v{vt}, 31, v0"); g(f"v_mul_u32_u24 v{vXo}, 1280, v{vt}")
    g(f"v_lshrrev_b32 v{vt+1}, 5, v0"); g(f"v_lshl_add_u32 v{vXo}, v{vt+1}, 3, v{vXo}")
    g(f"s_lshl_b32 s{sT0}, s{sI}, 1"); g(f"s_lshr_b32 s{sT1}, s{sG}, 1"); g(f"s_add_u32 s{sT0}, s{sT0}, s{sT1}")
    g(f"s_lshl_b32 s{sCnt}, s{sT0}, 6")
    g(f"s_mul_i32 s{sXo}, s{sT0}, {32*1280}")
    g(f"s_mul_i32 s{sT0}, s{sJ}, 160"); g(f"s_add_u32 s{sXo}, s{sXo}, s{sT0}")
    g(f"s_and_b32 s{sT1}, s{sG}, 1"); g(f"s_mul_i32 s{sT1}, s{sT1}, 80"); g(f"s_add_u32 s{sXo}, s{sXo}, s{sT1}")
    g(f"s_mul_i32 s{sWo}, s{sG}, {160*1280}"); g(f"s_add_u32 s{sWo}, s{sWo}, s{sT0}")
    g("s_waitcnt lgkmcnt(0)")
    srd(g, sWa, sP3+2, sP3+3, S_TOK*D*2)
    for kk in range(5):
        g(f"buffer_load_dwordx2 {V(vXr+2*kk,2)}, v{vXo}, {S(sWa,4)}, s{sXo} offen offset:{16*kk}")
    srd(g, sWb, sP2+2, sP2+3, S_TOK*2)
    g(f"v_and_b32 v{vt}, 31, v0"); g(f"v_lshlrev_b32 v{vt}, 1, v{vt}")
    g(f"buffer_load_ushort v{vB2}, v{vt}, {S(sWb,4)}, s{sCnt} offen")
    g(f"s_and_b32 s{sOut+1}, s{sOut+1}, 0xffff"); g(f"s_mov_b32 s{sOut+2}, {S_TOK*D*2}"); g(f"s_mov_b32 s{sOut+3}, 0x20000")
    vm = Alloc(common_end, 255, "v")
    TB = [vm(8,4), vm(8,4)]
    DR = vm(d1*8, 4); ACC = vm(64, 4); vB = vm(16, 4); vBr = vm(8, 2)
    nv1 = vm.p
    acc = lambda a, b: ACC + (2*a+b)*16
    g(f"s_mul_i32 s{sTso}, s{sG}, {512*F*2}"); g(f"s_lshl_b32 s{sT1}, s{sFa}, 7"); g(f"s_add_u32 s{sTso}, s{sTso}, s{sT1}")
    g(f"s_lshl_b32 s{sDso}, s{sDb}, 18"); g(f"s_lshl_b32 s{sT1}, s{sG}, 15")
    g(f"s_add_u32 s{sDso}, s{sDso}, s{sT1}"); g(f"s_add_u32 s{sDso}, s{sDso}, {WS_HF}")
    srd(g, sWa, sP, sP+1, S_TOK*F*2)
    srd(g, sWb, sP+2, sP+3, F*2)
    if k.nobar:
        lds_spin(k, vCnt, CNT_HT, vt+2, sT2, sSp, 1)
        lds_spin(k, vCnt, CNT_QX, vt+2, sT2, sSp, 4)
    g(f"s_cmp_ge_u32 s{sN}, 30")
    g("s_cbranch_scc1 L_m2")
    g(f"v_lshrrev_b32 v{vt}, 5, v0"); g(f"v_lshlrev_b32 v{vt}, 3, v{vt}")
    g(f"s_lshr_b32 s{sT1}, s{sG}, 1"); g(f"s_lshl_b32 s{sT1}, s{sT1}, 6"); g(f"s_lshl_b32 s{sT2}, s{sFa}, 7")
    g(f"s_add_u32 s{sT1}, s{sT1}, s{sT2}")
    for q in range(4):
        g(f"buffer_load_dwordx2 {V(vBr+2*q,2)}, v{vt}, {S(sWb,4)}, s{sT1} offen offset:{16*q}")
    if k.pack4:
        g(f"v_and_b32 v{vt}, 15, v0"); g(f"v_lshlrev_b32 v{vt}, {FSH}, v{vt}")
        g(f"s_lshl_b32 s{sT1}, s{sG}, {4+FSH}"); g(f"s_add_u32 s{sT1}, s{sT1}, {WS_HFL}")
        poll_flags(k, vt, f"s{sT1}", vt+4, 4, sSp, sleep=hsleep)
    else:
        g(f"v_lshlrev_b32 v{vt}, {FSH}, v0")
        g(f"s_lshl_b32 s{sT1}, s{sG}, {6+FSH}"); g(f"s_add_u32 s{sT1}, s{sT1}, {WS_HFL}")
        poll_flags(k, vt, f"s{sT1}", vt+1, 1, sSp, sleep=hsleep)
    st("hflags")
    for q in range(4):
        for kk in range(2):
            g(f"v_lshlrev_b32 v{vB+4*q+2*kk}, 16, v{vBr+2*q+kk}")
            g(f"v_and_b32 v{vB+4*q+2*kk+1}, 0xffff0000, v{vBr+2*q+kk}")
    if gate: lds_spin(k, vCnt, CNT_GATE if k.gate2 else CNT_RD0, vt+2, sT2, sSp, 4)
    stream_gemm(k, "m1", 32, d1, F*2, sWa, sTso, vTsrc1, sRing, vTr1, TB, "nat", sDso, [vL16, vD1], DR, 2, acc, True, sCnt)
    st("m1k")
    g(f"s_setprio {eprio}")
    srd(g, sWa, sP2, sP2+1, F*S_TOK*2)
    g(f"s_lshl_b32 s{sT1}, s{sXc}, 9")
    g(f"s_cmp_eq_u32 s{sG}, 3"); g("s_cbranch_scc1 L_m1_np")
    g(f"buffer_load_dword v255, v{vW2p}, {S(sWa,4)}, s{sT1} offen")
    g.label("L_m1_np")
    g.nop(12)
    for tt in range(4):
        if tt == 3: g("s_waitcnt lgkmcnt(8)")
        for q in range(4): g(f"ds_write_b128 v{vWr}, {V(ACC+16*tt+4*q,4)} offset:{tt*4096 + q*1024}")
    g("s_waitcnt lgkmcnt(0)")
    lds_signal(g, vCnt, vOne, CNT_M1A)
    lds_spin(k, vCnt, CNT_M1A, vt+2, sT2, sSp, 4)
    for s_ in range(4):
        if s_ == 3: g("s_waitcnt lgkmcnt(4)")
        for q in range(4): g(f"ds_read_b128 {V(ACC+16*s_+4*q,4)}, v{vRd} offset:{s_*RING + q*1024}")
    for r in range(0, 16, 2): g(pk("add", ACC+r, V(ACC+r,2), V(ACC+16+r,2)))
    g("s_waitcnt lgkmcnt(0)")
    lds_signal(g, vCnt, vOne, CNT_M1B)
    for r in range(0, 16, 2): g(pk("add", ACC+32+r, V(ACC+32+r,2), V(ACC+48+r,2)))
    for r in range(0, 16, 2): g(pk("add", ACC+r, V(ACC+r,2), V(ACC+32+r,2)))
    gelu16(g, ACC, vB, vt, sC2, vC1, vOnes)
    for kk in range(8): g(f"v_cvt_pk_bf16_f32 v{ACC+16+kk}, v{ACC+2*kk}, v{ACC+2*kk+1}")
    g(f"s_lshr_b32 s{sT1}, s{sG}, 1"); g(f"s_lshl_b32 s{sT1}, s{sT1}, 1"); g(f"s_lshl_b32 s{sT2}, s{sFa}, 2")
    g(f"s_add_u32 s{sT1}, s{sT1}, s{sT2}"); g(f"s_lshl_b32 s{sT1}, s{sT1}, 10"); g(f"s_add_u32 s{sT1}, s{sT1}, {WS_GF}")
    g(f"buffer_store_dwordx4 {V(ACC+16,4)}, v{vGst}, {S(sWS,4)}, s{sT1} offen sc1")
    g(f"buffer_store_dwordx4 {V(ACC+20,4)}, v{vGst}, {S(sWS,4)}, s{sT1} offen offset:1024 sc1")
    g(f"s_mul_i32 s{sT0}, s{sDb}, 24"); g(f"s_add_u32 s{sT0}, s{sT0}, s{sFa}"); g(f"s_lshl_b32 s{sT0}, s{sT0}, 2")
    g(f"s_add_u32 s{sT0}, s{sT0}, s{sG}"); g(f"s_lshl_b32 s{sT0}, s{sT0}, {FSH}"); g(f"s_add_u32 s{sT0}, s{sT0}, {WS_GFL}")
    g("s_waitcnt vmcnt(0)")
    write_flag(g, sT0, vt+1, vt+2)
    st("gflag")
    g(f"s_setprio {prio}")
    lds_spin(k, vCnt, CNT_M1B, vt+2, sT2, sSp, 4)
    if k.gskip == 2: g("s_branch L_gdone")
    g.label("L_m2")
    if k.gskip == 2: g("s_branch L_gdone")
    if k.stamps:
        while len(k.names["G"]) < 11: k.names["G"].append("_")
    vb = Alloc(common_end, 255, "v")
    TB = [vb(12,4), vb(12,4)]
    DEPTH = 6
    DR = vb(80, 4); ACC = vb(96, 4)
    nv2 = vb.p
    acc = lambda a, b: ACC + (3*a+b)*16
    srd(g, sWa, sP2, sP2+1, F*S_TOK*2)
    srd(g, sWb, sP3, sP3+1, D*D*2)
    g(f"s_mul_i32 s{sTso}, s{sG}, {384*S_TOK*2}"); g(f"s_lshl_b32 s{sT1}, s{sI}, 7"); g(f"s_add_u32 s{sTso}, s{sTso}, s{sT1}")
    g(f"s_mul_i32 s{sDso}, s{sJ}, {3*96*1024}"); g(f"s_mul_i32 s{sT1}, s{sG}, {24*1024}")
    g(f"s_add_u32 s{sDso}, s{sDso}, s{sT1}"); g(f"s_add_u32 s{sDso}, s{sDso}, {WS_GF}")
    g(f"s_mul_i32 s{sT1}, s{sN}, 200"); g(f"s_lshl_b32 s{sT2}, s{sG}, 6"); g(f"s_add_u32 s{sT1}, s{sT1}, s{sT2}")
    g(f"s_lshl_b32 s{sT1}, s{sT1}, 7")
    g(f"v_lshlrev_b32 v{vt}, 3, v{vL16}")
    g(f"s_cmp_eq_u32 s{sG}, 3"); g(f"s_cselect_b32 exec_lo, 0xff, -1"); g(f"s_cselect_b32 exec_hi, 0, -1")
    g(f"buffer_load_dword v255, v{vt}, {S(sWb,4)}, s{sT1} offen")
    g("s_mov_b64 exec, -1")
    g(f"s_mul_i32 s{sT1}, s{sJ}, 5"); g(f"s_lshr_b32 s{sT1}, s{sT1}, 2"); g(f"s_mul_i32 s{sT1}, s{sT1}, {96 << FSH}")
    g(f"s_mul_i32 s{sT2}, s{sG}, {24 << FSH}"); g(f"s_add_u32 s{sT1}, s{sT1}, s{sT2}"); g(f"s_add_u32 s{sT1}, s{sT1}, {WS_GFL}")
    poll_flags(k, vGfl, f"s{sT1}", vt+1, 1, sSp, sleep=gsleep)
    st("gflags")
    stream_gemm(k, "m2", 24, DEPTH, S_TOK*2, sWa, sTso, vTsrc2, sRing, vTr2, TB, "perm", sDso, vD2, DR, 3, acc, False, sCnt)
    st("m2k")
    g(f"s_setprio {e2prio}")
    sSt = [sFa, sDb, sFl, sCnt, sTso]
    g(f"s_mul_i32 s{sT0}, s{sJ}, 52"); g(f"s_lshr_b32 s{sT0}, s{sT0}, 8"); g(f"s_mul_i32 s{sT0}, s{sT0}, 5")
    g(f"s_sub_u32 s{sT0}, s{sJ}, s{sT0}")
    for s_ in range(5):
        g(f"s_mov_b32 s{sSt[s_]}, s{sT0}")
        g(f"s_add_u32 s{sT0}, s{sT0}, 1"); g(f"s_cmp_eq_u32 s{sT0}, 5"); g(f"s_cselect_b32 s{sT0}, 0, s{sT0}")
    def issue_wo(stage, slot):
        for u in range(5):
            g(f"s_add_u32 m0, s{sRing}, {slot*5120 + u*1024}")
            if u == 0:
                g(f"s_mul_i32 s{sT1}, s{sSt[stage]}, {32*1280}"); g(f"s_add_u32 s{sT1}, s{sT1}, s{sWo}")
            else: g("s_nop 0")
            g(f"buffer_load_dwordx4 v{vWsrc[u]}, {S(sWb,4)}, s{sT1} offen lds")
    for s_ in range(3): issue_wo(s_, s_)
    g(f"v_lshlrev_b32 v{vB2}, 16, v{vB2}")
    for kk in range(5):
        g(f"v_lshlrev_b32 v{RES+4*kk}, 16, v{vXr+2*kk}")
        g(f"v_and_b32 v{RES+4*kk+1}, 0xffff0000, v{vXr+2*kk}")
        g(f"v_lshlrev_b32 v{RES+4*kk+2}, 16, v{vXr+2*kk+1}")
        g(f"v_and_b32 v{RES+4*kk+3}, 0xffff0000, v{vXr+2*kk+1}")
    g(f"v_mov_b32 v{vt+4}, v{vB2}")
    for r in range(0, 20, 2): g(pk("add", RES+r, V(RES+r,2), V(vt+4,2), None, "[1,0]"))
    g(f"s_lshl_b32 s{sT1}, s{sI}, {5+FSH}"); g(f"s_lshl_b32 s{sT2}, s{sG}, {3+FSH}"); g(f"s_add_u32 s{sT1}, s{sT1}, s{sT2}")
    g(f"s_add_u32 s{sT1}, s{sT1}, {WS_OFL}")
    g(f"v_and_b32 v{vt}, 7, v0"); g(f"v_lshlrev_b32 v{vt}, {FSH}, v{vt}")
    g(f"s_mul_i32 s{sDso}, s{sI}, 81920"); g(f"s_mul_i32 s{sT0}, s{sG}, 10240")
    g(f"s_add_u32 s{sDso}, s{sDso}, s{sT0}"); g(f"s_add_u32 s{sDso}, s{sDso}, {WS_OF}")
    poll_flags(k, vt, f"s{sT1}", vt+1, 1, sSp, sleep=osleep)
    st("oflags")
    for s_ in range(5):
        g(f"s_lshl_b32 s{sT0}, s{sSt[s_]}, 11"); g(f"s_add_u32 s{sT0}, s{sT0}, s{sDso}")
        for m in range(2):
            for ss in range(2):
                kk = 2*s_ + m
                g(f"buffer_load_dwordx4 {V(DR+(2*kk+ss)*4,4)}, v{vL16 if ss==0 else vO1}, {S(sWS,4)}, s{sT0} offen offset:{m*1024} sc1")
    def wo_rd(kk, buf):
        stage = kk // 2; slot = stage % 3; m = kk % 2
        for a in range(3):
            for t in range(2):
                g(f"ds_read_b64_tr_b16 {V(TB[buf]+4*a+2*t,2)}, v{vWtr} offset:{slot*5120 + m*2560 + t*640 + a*64}")
    def wo_mf(kk, buf):
        for a in range(3):
            for ss in range(2):
                c = acc(ss, a)
                g(f"v_mfma_f32_32x32x16_bf16 {V(c,16)}, {V(TB[buf]+4*a,4)}, {V(DR+(2*kk+ss)*4,4)}, {V(c,16)}")
    vw = [16, 17, 18, 5, 0]
    g(f"s_waitcnt vmcnt({vw[0]})")
    wo_rd(0, 0)
    for kk in range(10):
        stage = kk // 2
        if kk < 9:
            if (kk+1) % 2 == 0:
                g("s_waitcnt lgkmcnt(0)")
                wo_mf(kk, kk % 2)
                if stage < 2: issue_wo(stage+3, stage % 3)
                g(f"s_waitcnt vmcnt({vw[stage+1]})")
                wo_rd(kk+1, (kk+1) % 2)
            else:
                wo_rd(kk+1, (kk+1) % 2)
                g("s_waitcnt lgkmcnt(6)")
                wo_mf(kk, kk % 2)
        else:
            g("s_waitcnt lgkmcnt(0)")
            wo_mf(kk, kk % 2)
    st("wok")
    def quad(Q):
        ss = Q // 10; qq = Q % 10
        return acc(ss, qq // 4) + 4*(qq % 4)
    g.nop(12)
    for o in range(4):
        g(f"s_cmp_eq_u32 s{sG}, {o}"); g(f"s_cbranch_scc1 L_fin_w{o}")
        g(f"s_sub_u32 s{sT1}, {o+3}, s{sG}"); g(f"s_and_b32 s{sT1}, s{sT1}, 3"); g(f"s_mul_i32 s{sT1}, s{sT1}, 5120")
        g(f"v_add_u32 v{vt+1}, s{sT1}, v{vWr}")
        for kk in range(5): g(f"ds_write_b128 v{vt+1}, {V(quad(5*o+kk),4)} offset:{kk*1024}")
        g.label(f"L_fin_w{o}")
    g("s_waitcnt lgkmcnt(0)")
    lds_signal(g, vCnt, vOne, CNT_FA)
    for o in range(4):
        g(f"s_cmp_lg_u32 s{sG}, {o}"); g(f"s_cbranch_scc1 L_fin_mv{o}")
        for kk in range(5):
            for r in (0, 2): g(pk("add", RES+4*kk+r, V(RES+4*kk+r,2), V(quad(5*o+kk)+r,2)))
        g.label(f"L_fin_mv{o}")
    lds_spin(k, vCnt, CNT_FA, vt+2, sT2, sSp, 4)
    P = DR
    for k3 in range(1, 4):
        g(f"s_add_u32 s{sT1}, s{sG}, {k3}"); g(f"s_and_b32 s{sT1}, s{sT1}, 3")
        g(f"s_mul_i32 s{sT2}, s{sT1}, {RING}"); g(f"s_add_u32 s{sT2}, s{sT2}, {L_RING + ((-k3-1+4) & 3)*5120}")
        g(f"v_add_u32 v{vt+1}, s{sT2}, v{vL16}")
        for kk in range(5): g(f"ds_read_b128 {V(P+20*(k3-1)+4*kk,4)}, v{vt+1} offset:{kk*1024}")
    for k3 in range(3):
        g(f"s_waitcnt lgkmcnt({10-5*k3})")
        for r in range(0, 20, 2): g(pk("add", RES+r, V(RES+r,2), V(P+20*k3+r,2)))
    for kk in range(5):
        g(f"v_cvt_pk_bf16_f32 v{P+2*kk}, v{RES+4*kk}, v{RES+4*kk+1}")
        g(f"v_cvt_pk_bf16_f32 v{P+2*kk+1}, v{RES+4*kk+2}, v{RES+4*kk+3}")
        g(f"buffer_store_dwordx2 {V(P+2*kk,2)}, v{vXo}, {S(sOut,4)}, s{sXo} offen offset:{16*kk}{k.outmod}")
    g.label("L_gdone")
    if k.stamps:
        for r in ("G1", "G2"): k.names[r] = k.names[r][:8] + k.names["G"][8:]
    k.dump("G", sT0, vt, vt+1)
    if k.stamps:
        for r in ("G1", "G2"): k.names[r] = k.names[r][:8] + k.names["G"][8:]
    print("gemm vgprs", nv1, vb.p)
    return max(nv1, vb.p)

NAME = "parallel_sum__grouped_kv_mqa__mixer_token_mlp__prompt_kernel"
def gen_fused(stamps=False, name=NAME, prio=0, gate=1, xrot=0, niter=8, hprobe=0, gprobe=0, w1probe=1, wqdelay=2, xprobe=0, wqprobe=0, eprio=0, e2prio=0, pos=4, xdiag=0, osleep=1, gsleep=1, remap=1, kvrot=0, krot=0, qpat=1, gpoll=1, spinsleep=0, gskip=0, d1=8, ksleep=2, hsleep=2, outm=0, kvprio=0, prog=1, nobar=0, pack4=1, hprio=0, hwait=4, kvfirst=1, hbar=0, kvself=0, early=0, exp_nodma=0, gate2=0, stage=0, hx0=0, kvpd=1, dprio=0, aprio=0, kvprobe=0):
    k = K(stamps); g = k.g; k.xdiag = xdiag; k.gpoll = gpoll; k.gsleep2 = spinsleep; k.spinsleep = 0; k.gskip = gskip; k.kvprio = kvprio; k.nobar = nobar; k.pack4 = pack4; k.kvfirst = kvfirst; k.early = early; k.kvprobe = kvprobe; k.dprio = dprio; k.aprio = aprio; k.hx0 = hx0; k.kvpd = kvpd; k.stage = stage; k.gate2 = gate2; k.exp_nodma = exp_nodma; k.kvself = kvself; k.hprio = hprio; k.hwait = hwait; k.hbar = hbar; k.outmod = ['', ' sc1', ' nt', ' sc0 sc1', ' sc1 nt'][outm]
    g.raw(kernel_header(name))
    g("s_cmp_ge_u32 s2, 256"); g("s_cbranch_scc1 L_end")
    k.stamp("A", "rstart", real=True); k.stamp("A", "start")
    g(f"s_load_dwordx2 {S(sPtr,2)}, s[0:1], {KA_WS}")
    g(f"s_load_dwordx8 {S(sKA,8)}, s[0:1], {KA_X}")
    g(f"s_load_dwordx2 {S(sKA+8,2)}, s[0:1], {KA_W1}")
    g("v_lshrrev_b32 v1, 6, v0"); g("v_and_b32 v0, 63, v0")
    g(f"v_readfirstlane_b32 s{sW}, v1")
    g("v_mov_b32 v1, 0"); g("v_lshlrev_b32 v2, 2, v0"); g(f"v_add_u32 v2, {L_CNT}, v2")
    g(f"s_cmp_lg_u32 s{sW}, 7"); g("s_cbranch_scc1 L_nz")
    g("s_mov_b64 exec, 0xffff"); g("ds_write_b32 v2, v1"); g("s_mov_b64 exec, -1")
    g.label("L_nz")
    g(f"s_and_b32 s{sXc}, s2, 7"); g(f"s_lshr_b32 s{sN}, s2, 3")
    if remap:
        g(f"s_lshl_b32 s{sI}, s{sXc}, 2"); g(f"s_lshr_b32 s{sJ}, s{sN}, 3"); g(f"s_add_u32 s{sI}, s{sI}, s{sJ}")
        g(f"s_and_b32 s{sJ}, s{sN}, 7")
    else:
        g(f"s_lshl_b32 s{sI}, s{sXc}, 2"); g(f"s_and_b32 s{sJ}, s{sN}, 3"); g(f"s_add_u32 s{sI}, s{sI}, s{sJ}")
        g(f"s_lshr_b32 s{sJ}, s{sN}, 2")
    phase_p(k, xrot, w1probe, wqdelay, xprobe, wqprobe, qpat, ksleep, prog)
    nva = attention(k, niter, pos, kvrot)
    g.raw(".p2align 6")
    nvg = gemm_waves(k, prio, gate, eprio, e2prio, osleep, gsleep, d1, hsleep)
    g.label("L_end")
    g("s_endpgm")
    return k, g.text(), kernel_desc(name, 256), LDS_TOTAL

HEADER = open("header.txt").read() if __import__("os").path.exists("header.txt") else ""
def build_file(path, stamps=False, **kw):
    from build import HEADER
    k, text, desc, lds = gen_fused(stamps, **kw)
    out = HEADER + f"; @launch grid=(256,1,1) block=(512,1,1) lds={lds}\n" + '.amdgcn_target "amdgcn-amd-amdhsa--gfx950"\n' + text + desc
    open(path, "w").write(out)
    return k
if __name__ == "__main__":
    import sys, hazard
    k = build_file("f.s", stamps=False)
    hazard.check(open("f.s").read())
    k = build_file("fs.s", stamps=True)
    print(k.names)
```

```python
import math, struct
from asm import *
from lay2 import *

def f32(x): return "0x%08x" % struct.unpack("<I", struct.pack("<f", x))[0]
TBOUND2 = 8100.0

sWS, sI, sJ, sW, sNon, sN, sXc = 4, 8, 9, 10, 11, 12, 13
sPtr = 14
sKA = 20
SFREE = 18
STB = 64

class K:
    def __init__(self, stamps):
        self.g = Gen(); self.stamps = stamps; self.uid = 0
        self.names = {}
        self.xdiag = False
    def tag(self, p):
        self.uid += 1; return f"{p}{self.uid}"
    def stamp(self, role, name, real=False):
        if not self.stamps: return
        lst = self.names.setdefault(role, [])
        k = len(lst); assert k < 19, role
        r = STB + 2*k
        self.g(f"s_memtime s[{r}:{r+1}]" if not real else f"s_memrealtime s[{r}:{r+1}]")
        lst.append(name)
    def fork(self, role, parent, pad=None):
        if self.stamps:
            self.names[role] = list(self.names.get(parent, []))
            if pad:
                while len(self.names[role]) < pad: self.names[role].append("_")
    def dump(self, role, sT, v1, v2):
        if not self.stamps: return
        g = self.g
        self.stamp(role, "end"); self.stamp(role, "rend", real=True)
        g(f"s_lshl_b32 s{sT}, s2, 3"); g(f"s_add_u32 s{sT}, s{sT}, s{sW}"); g(f"s_lshl_b32 s{sT}, s{sT}, 7")
        g(f"s_add_u32 s{sT}, s{sT}, {WS_DBG}")
        g("s_waitcnt lgkmcnt(0)"); g("s_mov_b64 exec, 1"); g(f"v_mov_b32 v{v2}, 0")
        for i in range(len(self.names[role])):
            g(f"v_mov_b32 v{v1}, s{STB+2*i}")
            g(f"buffer_store_dword v{v1}, v{v2}, s[{sWS}:{sWS+3}], s{sT} offen offset:{4*i}")
        g("s_mov_b64 exec, -1")

def lds_signal(g, vcnt, vone, off):
    g("s_mov_b64 exec, 1"); g(f"ds_add_u32 v{vcnt}, v{vone} offset:{off}"); g("s_mov_b64 exec, -1")

def lds_spin(k, vcnt, off, vtmp, stmp, scnt, target, have=None):
    g = k.g; t = k.tag("sp")
    if have is not None:
        g(f"v_readfirstlane_b32 s{stmp}, v{have}")
        g(f"s_cmp_ge_u32 s{stmp}, {target}")
        g(f"s_cbranch_scc1 L_{t}_ok")
    if have is None and getattr(k, "spinsleep", 0):
        g(f"ds_read_b32 v{vtmp}, v{vcnt} offset:{off}")
        g("s_waitcnt lgkmcnt(0)")
        g(f"v_readfirstlane_b32 s{stmp}, v{vtmp}")
        g(f"s_cmp_ge_u32 s{stmp}, {target}")
        g(f"s_cbranch_scc1 L_{t}_ok")
    g(f"s_mov_b32 s{scnt}, 0")
    g.label(f"L_{t}")
    if getattr(k, "spinsleep", 0): g(f"s_sleep {k.spinsleep}")
    g(f"ds_read_b32 v{vtmp}, v{vcnt} offset:{off}")
    g(f"s_add_u32 s{scnt}, s{scnt}, 1")
    g("s_waitcnt lgkmcnt(0)")
    g(f"v_readfirstlane_b32 s{stmp}, v{vtmp}")
    g(f"s_cmp_ge_u32 s{scnt}, {SPIN_MAX}")
    g(f"s_cbranch_scc1 L_{t}_ok")
    g(f"s_cmp_ge_u32 s{stmp}, {target}")
    g(f"s_cbranch_scc0 L_{t}")
    g.label(f"L_{t}_ok")

def poll_flags(k, voff, soff, vF, n, scnt, sleep=1):
    g = k.g; t = k.tag("pf")
    g(f"s_mov_b32 s{scnt}, 0")
    g.label(f"L_{t}")
    op = "buffer_load_dword" if n == 1 else "buffer_load_dwordx4"
    g(f"{op} {V(vF,n)}, v{voff}, {S(sWS,4)}, {soff} offen sc1")
    g(f"s_add_u32 s{scnt}, s{scnt}, 1")
    g("s_waitcnt vmcnt(0)")
    g(f"v_cmp_ne_u32 vcc, s{sNon}, v{vF}")
    for r in range(1, n):
        g(f"v_xor_b32 v{vF+r}, s{sNon}, v{vF+r}")
    if n == 4:
        g(f"v_or3_b32 v{vF+1}, v{vF+1}, v{vF+2}, v{vF+3}")
        g(f"v_cmp_ne_u32 s[{SFREE}:{SFREE+1}], 0, v{vF+1}")
        g("s_nop 1")
        g(f"s_or_b64 vcc, vcc, s[{SFREE}:{SFREE+1}]")
    g(f"s_cmp_ge_u32 s{scnt}, {SPIN_MAX >> 4}")
    g(f"s_cbranch_scc1 L_{t}_ok")
    g("s_nop 1")
    g(f"s_cbranch_vccz L_{t}_ok")
    if sleep: g(f"s_sleep {sleep}")
    g(f"s_branch L_{t}")
    g.label(f"L_{t}_ok")

def poll_flags4(k, voff, soff, vF, scnt, stmp, sleep=2):
    g = k.g; t = k.tag("pf")
    g(f"s_mov_b32 s{scnt}, 0")
    g.label(f"L_{t}")
    g(f"s_mov_b32 s{stmp}, s{soff}")
    for q in range(4):
        g(f"buffer_load_dword v{vF+q}, v{voff}, {S(sWS,4)}, s{stmp} offen sc1")
        if q < 3: g(f"s_add_u32 s{stmp}, s{stmp}, {64 << FSH}")
    g(f"s_add_u32 s{scnt}, s{scnt}, 1")
    g("s_waitcnt vmcnt(0)")
    for r in range(4): g(f"v_xor_b32 v{vF+r}, s{sNon}, v{vF+r}")
    g(f"v_or3_b32 v{vF+1}, v{vF+1}, v{vF+2}, v{vF+3}")
    g(f"v_or_b32 v{vF}, v{vF}, v{vF+1}")
    g(f"v_cmp_ne_u32 vcc, 0, v{vF}")
    g(f"s_cmp_ge_u32 s{scnt}, {SPIN_MAX >> 4}")
    g(f"s_cbranch_scc1 L_{t}_ok")
    g("s_nop 1")
    g(f"s_cbranch_vccz L_{t}_ok")
    if sleep: g(f"s_sleep {sleep}")
    g(f"s_branch L_{t}")
    g.label(f"L_{t}_ok")

def flag4_addr(g, sD, sT, base, pack4):
    g(f"s_lshl_b32 s{sD}, s{sI}, 3"); g(f"s_add_u32 s{sD}, s{sD}, s{sJ}")
    if pack4:
        g(f"s_and_b32 s{sT}, s{sD}, 3"); g(f"s_lshl_b32 s{sT}, s{sT}, 2")
        g(f"s_lshr_b32 s{sD}, s{sD}, 2"); g(f"s_lshl_b32 s{sD}, s{sD}, {FSH}"); g(f"s_add_u32 s{sD}, s{sD}, s{sT}")
    else:
        g(f"s_lshl_b32 s{sD}, s{sD}, {FSH}")
    g(f"s_add_u32 s{sD}, s{sD}, {base}")

def write_flag(g, soff, vtmp, vzero):
    g(f"v_mov_b32 v{vtmp}, s{sNon}")
    g(f"v_mov_b32 v{vzero}, 0")
    g("s_mov_b64 exec, 1")
    g(f"buffer_store_dword v{vtmp}, v{vzero}, {S(sWS,4)}, s{soff} offen sc1")
    g("s_mov_b64 exec, -1")

def nonce_hash(g):
    g(f"s_mov_b32 s{SFREE}, s{sNon}")
    g(f"s_xor_b32 s{sNon}, s{sNon}, 0x5bd1e995")
    g(f"s_mul_i32 s{sNon}, s{sNon}, 0x9e3779b1")
    g(f"s_add_u32 s{sNon}, s{sNon}, 0x7f4a7c15")
    g(f"s_cmp_eq_u32 s{sNon}, s{SFREE}")
    g(f"s_addc_u32 s{sNon}, s{sNon}, 0")

def srd(g, dst, lo, hi, nbytes):
    g(f"s_mov_b32 s{dst}, s{lo}"); g(f"s_and_b32 s{dst+1}, s{hi}, 0xffff")
    g(f"s_mov_b32 s{dst+2}, 0x{nbytes:x}"); g(f"s_mov_b32 s{dst+3}, 0x20000")

def xreduce(g, reg, vt, op, which=(16, 32)):
    for wd in which:
        g(f"v_mov_b32 v{vt}, v{reg}"); g.nop(2)
        g(f"v_permlane{wd}_swap_b32 v{reg}, v{vt}"); g.nop(1)
        g(f"{op} v{reg}, v{reg}, v{vt}")

def phase_p(k, xrot=False, w1probe=1, wqdelay=1, xprobe=1, wqprobe=1, qpat=0, ksleep=2, prog=1):
    g = k.g
    va = Alloc(1, 255, "v"); sa = Alloc(sKA+12, STB, "s")
    sX = sa(4); sTg = sa(); sKs = sa(); sXoff = sa(); sT0 = sa(); sT1 = sa(); sT2 = sa(); sTile = sa(); sSc = sa(); sRot = sa(); sKi = sa(); sWrapK = sa(); sIncK = sa(); sOnes = sa(); sMask = sa()
    vT = va(); vG = va(); vXo = va(); vTmp = va(); vTmp2 = va(); vTmp3 = va(); vL16 = va(); vCn = va(); vOn = va()
    X = va(80, 4)
    vS = va(2, 2); vQ = va(2, 2); vRS = va(2, 2); vNB = va(2, 2); vR2 = va(); vP = va(8, 2)
    base = va.p
    if k.early:
        g(f"s_cmp_ge_u32 s{sW}, 6"); g("s_cbranch_scc1 L_dma")
        g(f"s_cmp_eq_u32 s{sW}, 4"); g("s_cbranch_scc1 L_dma")
    sXq = [sa() for _ in range(4)]
    g(f"v_and_b32 v{vT}, 15, v0")
    g(f"v_lshrrev_b32 v{vG}, 4, v0")
    g(f"s_lshr_b32 s{sTg}, s{sJ}, 1")
    g(f"s_cmp_lt_u32 s{sW}, 4")
    g(f"s_cselect_b32 s{sT0}, s{sW}, s{sTg}")
    g(f"s_lshl_b32 s{sKs}, s{sI}, 2")
    g(f"s_add_u32 s{sKs}, s{sKs}, s{sT0}")
    g(f"s_mul_i32 s{sXoff}, s{sKs}, {16*1280}")
    g(f"v_mul_u32_u24 v{vXo}, 1280, v{vT}")
    g(f"v_lshl_add_u32 v{vXo}, v{vG}, 4, v{vXo}")
    g(f"v_mov_b32 v{vCn}, {L_CNT}"); g(f"v_mov_b32 v{vOn}, 1")
    if k.xrot2: g(f"s_add_u32 s{sRot}, s{sI}, s{sXc}"); g(f"s_and_b32 s{sRot}, s{sRot}, 3")
    else: g(f"s_and_b32 s{sRot}, s{sI}, 3")
    g(f"s_mul_i32 s{sRot}, s{sRot}, {5 if prog else 0}")
    g(f"s_cmp_eq_u32 s{sW}, 5"); g(f"s_cselect_b32 s{sRot}, 0, s{sRot}")
    g(f"s_lshl_b32 s{sXq[0]}, s{sRot}, 6"); g(f"s_add_u32 s{sXq[0]}, s{sXq[0]}, s{sXoff}")
    for q in range(1, 4):
        g(f"s_add_u32 s{sXq[q]}, s{sRot}, {5*q}"); g(f"s_cmp_ge_u32 s{sXq[q]}, 20")
        g(f"s_cselect_b32 s{sXq[q]}, 1280, 0"); g(f"s_sub_u32 s{sXq[q]}, s{sXq[0]}, s{sXq[q]}")
    g("s_waitcnt lgkmcnt(0)")
    if not k.early: g("s_barrier")
    k.stamp("A", "bar0")
    if k.near:
        sKn = sa(4); sUn = sa()
        g(f"s_cmp_lt_u32 s{sW}, 4"); g("s_cbranch_scc1 L_near_done")
        g(f"s_cmp_eq_u32 s{sW}, 5"); g("s_cbranch_scc1 L_near_done")
        g(f"s_and_b32 s{sT0}, s{sJ}, 1"); g(f"s_cmp_eq_u32 s{sT0}, 1")
        g(f"s_cselect_b32 s{sKn}, s{sKA+6}, s{sKA+4}")
        g(f"s_cselect_b32 s{sKn+1}, s{sKA+7}, s{sKA+5}")
        g(f"s_and_b32 s{sKn+1}, s{sKn+1}, 0xffff")
        g(f"s_mov_b32 s{sKn+2}, {D*DH*2}"); g(f"s_mov_b32 s{sKn+3}, 0x20000")
        g(f"s_sub_u32 s{sUn}, s{sW}, 5"); g(f"s_max_i32 s{sUn}, s{sUn}, 0"); g(f"s_lshl_b32 s{sUn}, s{sUn}, 10")
        g(f"v_lshlrev_b32 v{vL16}, 4, v0")
        g(f"s_mov_b32 s{sT0}, s{sUn}")
        for nn in range(9):
            if nn == 8: g(f"s_cmp_lg_u32 s{sUn}, 0"); g("s_cbranch_scc1 L_near_done")
            g(f"s_add_u32 m0, s{sUn}, {L_WKV + nn*3072}")
            if nn: g(f"s_add_u32 s{sT0}, s{sT0}, 3072")
            else: g("s_nop 0")
            g(f"buffer_load_dwordx4 v{vL16}, {S(sKn,4)}, s{sT0} offen lds")
        g.label("L_near_done")
    srd(g, sX, sKA, sKA+1, S_TOK*D*2)
    g(f"s_cmp_ge_u32 s{sW}, 4"); g("s_cbranch_scc1 L_other")
    def xloads():
        for m in range(20):
            g(f"buffer_load_dwordx4 {V(X+4*m,4)}, v{vXo}, {S(sX,4)}, s{sXq[m//5]} offen offset:{64*m}")
    if k.kvfirst:
        g(f"s_cmp_lg_u32 s{sW}, s{sTg}"); g("s_cbranch_scc1 L_pre")
        if k.kvself:
            sKV0 = sa(4)
            g(f"s_and_b32 s{sT0}, s{sJ}, 1"); g(f"s_cmp_eq_u32 s{sT0}, 1")
            g(f"s_cselect_b32 s{sKV0}, s{sKA+6}, s{sKA+4}")
            g(f"s_cselect_b32 s{sKV0+1}, s{sKA+7}, s{sKA+5}")
            g(f"s_and_b32 s{sKV0+1}, s{sKV0+1}, 0xffff")
            g(f"s_mov_b32 s{sKV0+2}, {D*DH*2}"); g(f"s_mov_b32 s{sKV0+3}, 0x20000")
            g(f"v_lshlrev_b32 v{vL16}, 4, v0")
            xloads()
            g(f"s_mov_b32 s{sT0}, 0")
            for n in range(25):
                g(f"s_mov_b32 m0, {L_WKV + n*1024}")
                if n: g(f"s_add_u32 s{sT0}, s{sT0}, 1024")
                else: g("s_nop 0")
                g(f"buffer_load_dwordx4 v{vL16}, {S(sKV0,4)}, s{sT0} offen lds")
            lds_signal(g, vCn, vOn, CNT_KVI)
        else:
            xloads()
        g.label("L_pre")
    else:
        g.label("L_xload")
        xloads()
    srd(g, sWS, sPtr, sPtr+1, WS_SIZE)
    if not k.kvfirst: g(f"s_cmp_eq_u32 s{sW}, 5"); g("s_cbranch_scc1 L_nonce_done")
    g(f"s_load_dword s{sNon}, {S(sPtr,2)}, {WS_NONCE}")
    g.label("L_nonce_done")
    g(f"v_lshlrev_b32 v{vL16}, 4, v0")
    if not k.kvfirst: k.stamp("A", "xissued")
    ra = Alloc(base, 255, "v")
    vTrQ0 = ra(); vTrQ1 = ra(); vQd = [ra() for _ in range(5)]
    AB = [ra(20, 4), ra(20, 4)]; accQ = ra(20, 4)
    vTrKV = ra(); vTT = ra(); accKV = ra(8, 4); vZ = ra(4, 4)
    KB = [AB[0] + 8*q for q in range(k.kvpd + 1)]
    r1 = Alloc(base, 255, "v")
    vHw = r1(); vHr = r1(); HB = [r1(4, 4) for _ in range(4)]; vRS2 = r1(2, 2); vNB2 = r1(2, 2)
    g(f"v_bfe_u32 v{vTmp}, v0, 2, 2")
    g(f"v_and_b32 v{vTmp2}, 3, v0")
    if not k.kvfirst: g(f"s_cmp_eq_u32 s{sW}, 5"); g("s_cbranch_scc1 L_stats")
    g(f"v_lshl_add_u32 v{vTmp3}, v{vG}, 2, v{vTmp}")
    g(f"v_mul_u32_u24 v{vTrQ0}, 160, v{vTmp3}")
    g(f"v_lshl_add_u32 v{vTrQ0}, v{vTmp2}, 3, v{vTrQ0}")
    g(f"v_add_u32 v{vTrQ1}, 51200, v{vTrQ0}")
    g(f"v_lshl_add_u32 v{vTmp3}, v{vG}, 3, v{vTmp}")
    g(f"v_mul_u32_u24 v{vTrKV}, 40, v{vTmp3}")
    g(f"v_lshl_add_u32 v{vTrKV}, v{vTmp2}, 3, v{vTrKV}")
    g(f"v_add_u32 v{vTrKV}, {L_WKV}, v{vTrKV}")
    g(f"s_and_b32 s{sT1}, s{sW}, 1"); g(f"s_lshl_b32 s{sT1}, s{sT1}, 4")
    g(f"v_add_u32 v{vTT}, s{sT1}, v{vT}")
    g(f"s_lshr_b32 s{sTile}, s{sKs}, 1")
    g(f"s_mul_i32 s{sTile}, s{sTile}, {KV_TILE}")
    g(f"s_add_u32 s{sTile}, s{sTile}, {WS_KV}")
    g(f"s_lshr_b32 s{sT1}, s{sW}, 1"); g(f"s_mul_i32 s{sT1}, s{sT1}, 1280"); g(f"s_add_u32 s{sT1}, s{sT1}, {L_QX}")
    for ct in range(5):
        g(f"v_add_u32 v{vTmp}, {4*ct}, v{vG}")
        g(f"v_mul_u32_u24 v{vTmp2}, 52, v{vTmp}")
        g(f"v_lshrrev_b32 v{vTmp2}, 8, v{vTmp2}")
        g(f"v_mul_u32_u24 v{vTmp3}, 5, v{vTmp2}")
        g(f"v_sub_u32 v{vTmp}, v{vTmp}, v{vTmp3}")
        g(f"v_mul_u32_u24 v{vQd[ct]}, 2560, v{vTmp2}")
        g(f"v_lshrrev_b32 v{vTmp2}, 1, v{vTmp}")
        g(f"v_lshlrev_b32 v{vTmp2}, 9, v{vTmp2}")
        g(f"v_lshl_add_u32 v{vTmp2}, v{vTT}, 4, v{vTmp2}")
        g(f"v_and_b32 v{vTmp3}, 1, v{vTmp}")
        g(f"v_lshl_add_u32 v{vTmp2}, v{vTmp3}, 3, v{vTmp2}")
        g(f"v_lshlrev_b32 v{vTmp3}, 3, v{vTT}")
        g(f"v_add_u32 v{vTmp3}, 1024, v{vTmp3}")
        g(f"v_cmp_eq_u32 vcc, 4, v{vTmp}")
        g(f"v_add_u32 v{vQd[ct]}, s{sT1}, v{vQd[ct]}")
        g("s_nop 0")
        g(f"v_cndmask_b32 v{vTmp2}, v{vTmp2}, v{vTmp3}, vcc")
        g(f"v_add_u32 v{vQd[ct]}, v{vQd[ct]}, v{vTmp2}")
    if k.kvfirst:
        g(f"s_cmp_eq_u32 s{sW}, s{sTg}"); g("s_cbranch_scc1 L_stats0")
        if k.stage: lds_spin(k, vCn, CNT_X0, vTmp, sT0, sT1, 1)
        g.label("L_xload")
        xloads()
        g(f"v_lshlrev_b32 v{vL16}, 4, v0")
        if k.early:
            g(f"s_cmp_eq_u32 s{sW}, 5"); g("s_cbranch_scc1 L_stats1")
        g.label("L_stats0")
        if k.early:
            g("s_barrier")
            g.label("L_stats1")
        k.stamp("A", "xissued")
    g.label("L_stats")
    g(f"s_mov_b32 s{sOnes}, 0x3f803f80"); g(f"s_mov_b32 s{sMask}, 0xffff0000")
    for r in (vS, vS+1, vQ, vQ+1): g(f"v_mov_b32 v{r}, 0")
    if k.kvself:
        g(f"s_cmp_eq_u32 s{sW}, s{sTg}"); g("s_cbranch_scc1 L_xw_kv")
        g("s_waitcnt vmcnt(0)"); g("s_branch L_xw_done")
        g.label("L_xw_kv"); g("s_waitcnt vmcnt(25)")
        g.label("L_xw_done")
    for m in range(20):
        if not k.kvself: g(f"s_waitcnt vmcnt({19-m})")
        if k.xdiag and m in (0, 9): k.stamp("A", f"x{m}")
        for r in range(4):
            g(f"v_dot2c_f32_bf16 v{vS+(r&1)}, {('s%d' % sOnes) if k.small else '0x3f803f80'}, v{X+4*m+r}")
            g(f"v_dot2c_f32_bf16 v{vQ+(r&1)}, v{X+4*m+r}, v{X+4*m+r}")
    k.stamp("A", "xland")
    g(f"s_cmp_eq_u32 s{sW}, 5"); g("s_cbranch_scc1 L_nosig")
    lds_signal(g, vCn, vOn, CNT_XL)
    if k.stage or k.hx0:
        g(f"s_cmp_lg_u32 s{sW}, s{sTg}"); g("s_cbranch_scc1 L_nosig")
        lds_signal(g, vCn, vOn, CNT_X0)
    g.label("L_nosig")
    g.nop(1)
    g(f"v_add_f32 v{vS}, v{vS}, v{vS+1}")
    g(f"v_add_f32 v{vQ}, v{vQ}, v{vQ+1}")
    xreduce(g, vS, vTmp, "v_add_f32"); xreduce(g, vQ, vTmp, "v_add_f32")
    g(f"v_mul_f32 v{vS}, {f32(1/640)}, v{vS}")
    g(f"v_mul_f32 v{vQ}, {f32(1/640)}, v{vQ}")
    g(f"v_fma_f32 v{vQ}, -v{vS}, v{vS}, v{vQ}")
    g(f"v_max_f32 v{vQ}, 0, v{vQ}")
    g(f"v_add_f32 v{vTmp}, {f32(1e-5)}, v{vQ}")
    g(f"v_rsq_f32 v{vRS}, v{vTmp}"); g.nop(1)
    g(f"v_mul_f32 v{vNB}, v{vS}, v{vRS}")
    g(f"v_sub_f32 v{vNB}, 0, v{vNB}")
    g(f"s_cmp_eq_u32 s{sW}, 5"); g("s_cbranch_scc1 L_h")
    for kk in range(0, 80, 4):
        for r in range(4):
            g(f"v_lshlrev_b32 v{vP+2*r}, 16, v{X+kk+r}")
            g(f"v_and_b32 v{vP+2*r+1}, {('s%d' % sMask) if k.small else '0xffff0000'}, v{X+kk+r}")
        for r in range(4):
            g(f"v_pk_fma_f32 {V(vP+2*r,2)}, {V(vP+2*r,2)}, {V(vRS,2)}, {V(vNB,2)} op_sel_hi:[1,0,0]")
        for r in range(4):
            g(f"v_cvt_pk_bf16_f32 v{X+kk+r}, v{vP+2*r}, v{vP+2*r+1}")
    k.stamp("A", "normed")
    g("s_waitcnt lgkmcnt(0)")
    nonce_hash(g)
    k.fork("G1", "A")
    g(f"s_cmp_lg_u32 s{sW}, s{sTg}"); g("s_cbranch_scc1 L_q")
    g("s_setprio 3")
    if k.kvself: g("s_waitcnt vmcnt(0)")
    else: lds_spin(k, vCn, CNT_WKV, vTmp, sT0, sT1, 3)
    if k.kvdiag: g(f"s_memtime s[{STB+32}:{STB+33}]")
    for r in range(8): g(f"v_mov_b32 v{accKV+r}, 0")
    g(f"s_mul_i32 s{sT0}, s{sRot}, 1280"); g(f"v_add_u32 v{vTrKV}, s{sT0}, v{vTrKV}")
    g(f"s_mov_b32 s{sKi}, s{sRot}")
    def rdkv(m):
        b = KB[m % len(KB)]
        L = [f"ds_read_b64_tr_b16 {V(b+4*tile+2*t,2)}, v{vTrKV} offset:{t*160 + tile*32}" for tile in range(2) for t in range(2)]
        L += [f"s_add_u32 s{sKi}, s{sKi}, 1", f"s_cmp_eq_u32 s{sKi}, 20", f"s_cselect_b32 s{sT0}, s{sWrapK}, s{sIncK}",
              f"s_cselect_b32 s{sKi}, 0, s{sKi}", f"v_add_u32 v{vTrKV}, s{sT0}, v{vTrKV}"]
        return L
    g(f"s_mov_b32 s{sWrapK}, {(-19*1280) & 0xffffffff}"); g(f"s_mov_b32 s{sIncK}, 1280")
    g(f"s_and_b32 s{sT0}, s{sJ}, 1")
    g(f"s_cmp_eq_u32 s{sT0}, 1")
    g("s_cbranch_scc1 L_v")
    for which in ("K", "V"):
        if which == "V": g.label("L_v")
        PD = k.kvpd
        for mm in range(PD):
            for x in rdkv(mm): g(x)
        for m in range(20):
            b = KB[m % len(KB)]
            nx = rdkv(m+PD) if m + PD < 20 else []
            for x in nx: g(x)
            g(f"s_waitcnt lgkmcnt({4*min(PD, 19-m)})")
            for tile in range(2):
                if which == "K": g(f"v_mfma_f32_16x16x32_bf16 {V(accKV+4*tile,4)}, {V(b+4*tile,4)}, {V(X+4*m,4)}, {V(accKV+4*tile,4)}")
                else:            g(f"v_mfma_f32_16x16x32_bf16 {V(accKV+4*tile,4)}, {V(X+4*m,4)}, {V(b+4*tile,4)}, {V(accKV+4*tile,4)}")
        if k.kvdiag: g(f"s_memtime s[{STB+34}:{STB+35}]")
        g.nop(8)
        b = KB[0]
        for tile in range(2):
            g(f"v_cvt_pk_bf16_f32 v{b+2*tile}, v{accKV+4*tile}, v{accKV+4*tile+1}")
            g(f"v_cvt_pk_bf16_f32 v{b+2*tile+1}, v{accKV+4*tile+2}, v{accKV+4*tile+3}")
        if which == "K":
            g(f"v_lshrrev_b32 v{vTmp}, 1, v{vG}")
            g(f"v_lshlrev_b32 v{vTmp}, 9, v{vTmp}")
            g(f"v_lshl_add_u32 v{vTmp}, v{vTT}, 4, v{vTmp}")
            g(f"v_and_b32 v{vTmp2}, 1, v{vG}")
            g(f"v_lshl_add_u32 v{vTmp}, v{vTmp2}, 3, v{vTmp}")
            g(f"buffer_store_dwordx2 {V(b,2)}, v{vTmp}, {S(sWS,4)}, s{sTile} offen sc1")
            g(f"v_lshlrev_b32 v{vTmp2}, 3, v{vTT}")
            g("s_mov_b64 exec, 0xffff")
            g(f"buffer_store_dwordx2 {V(b+2,2)}, v{vTmp2}, {S(sWS,4)}, s{sTile} offen offset:{KV_KHI} sc1")
            g("s_mov_b64 exec, -1")
            g(f"v_mul_f32 v{vS}, v{accKV}, v{accKV}")
            for r in range(1, 4): g(f"v_fmac_f32 v{vS}, v{accKV+r}, v{accKV+r}")
            g(f"v_mul_f32 v{vQ}, v{accKV+4}, v{accKV+4}")
            for r in range(1, 4): g(f"v_fmac_f32 v{vQ}, v{accKV+4+r}, v{accKV+4+r}")
            g(f"v_cmp_eq_u32 vcc, 0, v{vG}"); g.nop(2)
            g(f"v_cndmask_b32 v{vQ}, 0, v{vQ}, vcc")
            g(f"v_add_f32 v{vS}, v{vS}, v{vQ}")
            xreduce(g, vS, vTmp3, "v_add_f32")
            for rot in (8, 4, 2, 1):
                g.nop(2); g(f"v_max_f32_dpp v{vS}, v{vS}, v{vS} row_ror:{rot} row_mask:0xf bank_mask:0xf")
            g(f"s_lshl_b32 s{sT1}, s{sKs}, 2"); g(f"s_add_u32 s{sT1}, s{sT1}, {WS_KMAX}")
            g(f"v_mov_b32 v{vTmp3}, 0")
            g("s_mov_b64 exec, 1")
            g(f"buffer_store_dword v{vS}, v{vTmp3}, {S(sWS,4)}, s{sT1} offen sc1")
            g("s_mov_b64 exec, -1")
            g("s_branch L_kv_pub")
        else:
            g(f"s_and_b32 s{sT1}, s{sTg}, 1"); g(f"s_mul_i32 s{sT1}, s{sT1}, {V_JJ}")
            g(f"s_add_u32 s{sT1}, s{sT1}, s{sTile}"); g(f"s_add_u32 s{sT1}, s{sT1}, {KV_V}")
            g(f"v_and_b32 v{vTmp2}, 1, v{vG}")
            g(f"v_mul_u32_u24 v{vTmp2}, {V_KH}, v{vTmp2}")
            g(f"v_lshrrev_b32 v{vTmp3}, 1, v{vG}")
            g(f"v_lshl_add_u32 v{vTmp2}, v{vTmp3}, 3, v{vTmp2}")
            g(f"v_add_u32 v{vTmp}, 7, v{vT}")
            g(f"v_cmp_gt_u32 vcc, 4, v{vT}"); g.nop(2)
            g(f"v_cndmask_b32 v{vTmp}, v{vTmp}, v{vT}, vcc")
            g(f"v_subrev_u32 v{vTmp3}, 10, v{vT}")
            g(f"v_cmp_le_u32 vcc, 14, v{vT}"); g.nop(2)
            g(f"v_cndmask_b32 v{vTmp}, v{vTmp}, v{vTmp3}, vcc")
            g(f"v_lshl_add_u32 v{vTmp}, v{vTmp}, 4, v{vTmp2}")
            g(f"buffer_store_dwordx2 {V(b,2)}, v{vTmp}, {S(sWS,4)}, s{sT1} offen sc1")
            g(f"v_add_u32 v{vTmp3}, 6, v{vT}")
            g(f"v_lshl_add_u32 v{vTmp3}, v{vTmp3}, 4, v{vTmp2}")
            g("s_mov_b32 exec_lo, 0x000f000f"); g("s_mov_b32 exec_hi, 0x000f000f")
            g(f"buffer_store_dwordx2 {V(b+2,2)}, v{vTmp3}, {S(sWS,4)}, s{sT1} offen sc1")
            g("s_mov_b64 exec, -1")
            g(f"v_and_b32 v{vTmp}, 1, v0")
            g(f"v_mul_u32_u24 v{vTmp}, {V_KH}, v{vTmp}")
            g(f"v_bfe_u32 v{vTmp2}, v0, 1, 1")
            g(f"v_mul_u32_u24 v{vTmp3}, {(ZERO_SLOT-ONES_SLOT)*16}, v{vTmp2}")
            g(f"v_add_u32 v{vTmp}, v{vTmp}, v{vTmp3}")
            g(f"v_subrev_u32 v{vTmp2}, 1, v{vTmp2}")
            g(f"v_and_b32 v{vZ}, 0x3f803f80, v{vTmp2}")
            for r in range(1, 4): g(f"v_mov_b32 v{vZ+r}, v{vZ}")
            g("s_mov_b64 exec, 15")
            g(f"buffer_store_dwordx4 {V(vZ,4)}, v{vTmp}, {S(sWS,4)}, s{sT1} offen offset:{ONES_SLOT*16} sc1")
            g("s_mov_b64 exec, -1")
    g.label("L_kv_pub")
    flag4_addr(g, sT0, sT1, WS_KVF, k.pack4)
    if k.kvdiag: g(f"s_memtime s[{STB+36}:{STB+37}]")
    g("s_waitcnt vmcnt(0)")
    write_flag(g, sT0, vTmp, vTmp2)
    g("s_setprio 0")
    g.label("L_q")
    if not k.xdiag: k.stamp("A", "kvpub")
    lds_spin(k, vCn, CNT_WQA if prog else CNT_WQ, vTmp, sT0, sT1, 3)
    k.stamp("A", "wqrdy")
    for r in range(20): g(f"v_mov_b32 v{accQ+r}, 0")
    def rdq(m):
        b = AB[m & 1]; bs = vTrQ0 if m < 10 else vTrQ1; mo = (m % 10)*5120
        return [f"ds_read_b64_tr_b16 {V(b+4*ct+2*t,2)}, v{bs} offset:{mo + t*2560 + ct*32}" for ct in range(5) for t in range(2)]
    for x in rdq(0): g(x)
    for m in range(20):
        b = AB[m & 1]
        nx = rdq(m+1) if m < 19 else []
        if prog and m + 1 in (9, 15):
            g("s_waitcnt lgkmcnt(0)")
            lds_spin(k, vCn, CNT_WQB if m + 1 == 9 else CNT_WQ, vTmp, sT0, sT1, 3)
        if qpat == 0:
            for x in nx: g(x)
            g(f"s_waitcnt lgkmcnt({10 if nx else 0})")
            for ct in range(5):
                g(f"v_mfma_f32_16x16x32_bf16 {V(accQ+4*ct,4)}, {V(b+4*ct,4)}, {V(X+4*m,4)}, {V(accQ+4*ct,4)}")
        else:
            for x in nx[:4]: g(x)
            g(f"s_waitcnt lgkmcnt({4 if nx else 0})")
            for ct in range(5):
                g(f"v_mfma_f32_16x16x32_bf16 {V(accQ+4*ct,4)}, {V(b+4*ct,4)}, {V(X+4*m,4)}, {V(accQ+4*ct,4)}")
                if ct < 3:
                    for x in nx[4+2*ct:6+2*ct]: g(x)
    g(f"s_mov_b32 s{sSc}, {f32(QSCALE)}")
    g.nop(7)
    b = AB[0]
    for ct in range(5):
        for r in range(4): g(f"v_mul_f32 v{accQ+4*ct+r}, s{sSc}, v{accQ+4*ct+r}")
        g(f"v_cvt_pk_bf16_f32 v{b+2*ct}, v{accQ+4*ct}, v{accQ+4*ct+1}")
        g(f"v_cvt_pk_bf16_f32 v{b+2*ct+1}, v{accQ+4*ct+2}, v{accQ+4*ct+3}")
        g(f"ds_write_b64 v{vQd[ct]}, {V(b+2*ct,2)}")
    g("s_waitcnt lgkmcnt(0)")
    k.stamp("A", "qdone")
    if k.nobar:
        lds_signal(g, vCn, vOn, CNT_QX)
        lds_spin(k, vCn, CNT_QX, vTmp, sT0, sT1, 4)
    else:
        g("s_barrier")
    if k.lay:
        main_lines = g.L; g.L = []
    else:
        g("s_branch L_attn")
    g.label("L_other")
    srd(g, sWS, sPtr, sPtr+1, WS_SIZE)
    g(f"s_load_dword s{sNon}, {S(sPtr,2)}, {WS_NONCE}")
    if not k.early: g(f"s_cmp_lg_u32 s{sW}, 5"); g("s_cbranch_scc1 L_dma")
    g.label("L_hwait")
    if k.early: g("s_barrier")
    if k.hprio: g(f"s_setprio {k.hprio}")
    if k.stage == 2 or k.hx0: lds_spin(k, vCn, CNT_X0, vTmp, sT0, sT1, 1)
    elif k.hwait: lds_spin(k, vCn, CNT_XL, vTmp, sT0, sT1, k.hwait)
    g("s_branch L_xload")
    g.label("L_h")
    if k.stamps: k.names["G1"] = k.names["G1"][:(7 if k.xdiag else 5)] + ([] if k.xdiag else ["_"])
    g(f"v_mul_f32 v{vTmp}, v{vRS}, v{vRS}")
    g(f"v_mul_f32 v{vTmp}, v{vTmp}, v{vQ}")
    g(f"v_add_f32 v{vTmp}, {f32(1e-5)}, v{vTmp}")
    g(f"v_rsq_f32 v{vR2}, v{vTmp}")
    g(f"v_bfe_u32 v{vTmp}, v0, 2, 2"); g(f"v_and_b32 v{vTmp2}, 3, v0")
    g(f"v_mul_f32 v{vRS2}, v{vRS}, v{vR2}")
    g(f"v_mul_f32 v{vNB2}, v{vNB}, v{vR2}")
    g(f"v_mul_u32_u24 v{vHw}, {HT_PITCH}, v{vT}")
    g(f"v_lshl_add_u32 v{vHw}, v{vG}, 4, v{vHw}")
    g(f"v_add_u32 v{vHw}, {L_HT}, v{vHw}")
    g(f"v_lshrrev_b32 v{vTmp3}, 5, v0")
    g(f"v_lshl_add_u32 v{vTmp3}, v{vTmp3}, 3, v{vTmp}")
    g(f"v_mul_u32_u24 v{vHr}, {HT_PITCH}, v{vTmp3}")
    g(f"v_lshl_add_u32 v{vHr}, v{vTmp2}, 3, v{vHr}")
    g(f"v_bfe_u32 v{vTmp3}, v0, 4, 1")
    g(f"v_lshl_add_u32 v{vHr}, v{vTmp3}, 5, v{vHr}")
    g(f"v_add_u32 v{vHr}, {L_HT}, v{vHr}")
    g(f"s_and_b32 s{sT0}, s{sJ}, 1")
    g(f"s_cmp_eq_u32 s{sT0}, 1")
    g("s_cbranch_scc1 L_h1")
    for half in range(2):
        if half == 1: g.label("L_h1")
        for mm in range(10):
            reg = X + 4*(10*half + mm)
            for r in range(4):
                g(f"v_lshlrev_b32 v{vP+2*r}, 16, v{reg+r}")
                g(f"v_and_b32 v{vP+2*r+1}, {('s%d' % sMask) if k.small else '0xffff0000'}, v{reg+r}")
            for r in range(4):
                g(f"v_pk_fma_f32 {V(vP+2*r,2)}, {V(vP+2*r,2)}, {V(vRS2,2)}, {V(vNB2,2)} op_sel_hi:[1,0,0]")
            for r in range(4): g(f"v_cvt_pk_bf16_f32 v{reg+r}, v{vP+2*r}, v{vP+2*r+1}")
            g(f"ds_write_b128 v{vHw}, {V(reg,4)} offset:{64*mm}")
        if half == 0: g("s_branch L_h2")
    g.label("L_h2")
    g(f"s_mul_i32 s{sT0}, s{sT0}, {10*131072}")
    g(f"s_lshl_b32 s{sT1}, s{sKs}, 10")
    g(f"s_add_u32 s{sT0}, s{sT0}, s{sT1}")
    g(f"s_add_u32 s{sT0}, s{sT0}, {WS_HF}")
    g("s_waitcnt lgkmcnt(0)")
    nonce_hash(g)
    def hrd(dtl):
        b = HB[dtl % 4]
        g(f"ds_read_b64_tr_b16 {V(b,2)}, v{vHr} offset:{64*dtl}")
        g(f"ds_read_b64_tr_b16 {V(b+2,2)}, v{vHr} offset:{64*dtl + 4*HT_PITCH}")
    hrd(0); hrd(1)
    for dtl in range(10):
        if dtl + 2 < 10:
            if dtl >= 2: g("s_nop 1")
            hrd(dtl+2); g("s_waitcnt lgkmcnt(4)")
        elif dtl + 1 < 10: g("s_waitcnt lgkmcnt(2)")
        else: g("s_waitcnt lgkmcnt(0)")
        g(f"buffer_store_dwordx4 {V(HB[dtl % 4],4)}, v{vL16}, {S(sWS,4)}, s{sT0} offen sc1")
        g(f"s_add_u32 s{sT0}, s{sT0}, 131072")
    flag4_addr(g, sT0, sT1, WS_HFL, k.pack4)
    k.stamp("G1", "hst")
    if k.nobar: lds_signal(g, vCn, vOn, CNT_HT)
    elif k.hbar: g("s_barrier")
    g("s_waitcnt vmcnt(0)")
    write_flag(g, sT0, vTmp, vTmp2)
    k.stamp("G1", "hflag")
    if not k.nobar and not k.hbar: g("s_barrier")
    g("s_setprio 0")
    g("s_branch L_gemm")
    g.label("L_dma")
    if k.kvprio: g("s_setprio 2")
    da = Alloc(1, 255, "v"); ds = Alloc(sKA+12, STB, "s")
    sWQ = ds(4); sKV = ds(4); sW1 = ds(4); sU = ds(); sM = ds(); sA = ds(); sB = ds(); sC = ds(); sCt = ds()
    sP0 = None
    vWo = [da() for _ in range(5)]; vA = da(); vB = da(); vC = da(); vL = da(); vCn2 = da(); vOn2 = da()
    g(f"s_sub_u32 s{sU}, s{sW}, 5"); g(f"s_max_i32 s{sU}, s{sU}, 0")
    g(f"v_lshlrev_b32 v{vL}, 4, v0")
    g(f"v_mov_b32 v{vCn2}, {L_CNT}"); g(f"v_mov_b32 v{vOn2}, 1")
    if k.early:
        for u in range(5):
            g(f"v_add_u32 v{vA}, {64*u}, v0")
            g(f"v_mul_u32_u24 v{vB}, 52429, v{vA}")
            g(f"v_lshrrev_b32 v{vB}, 19, v{vB}")
            g(f"v_mul_u32_u24 v{vC}, 10, v{vB}")
            g(f"v_sub_u32 v{vA}, v{vA}, v{vC}")
            g(f"v_lshlrev_b32 v{vWo[u]}, 4, v{vA}")
            g(f"v_bfe_u32 v{vA}, v{vB}, 2, 2")
            g(f"v_lshlrev_b32 v{vA}, 3, v{vA}")
            g(f"v_lshrrev_b32 v{vC}, 4, v{vB}")
            g(f"v_lshl_add_u32 v{vA}, v{vC}, 2, v{vA}")
            g(f"v_and_b32 v{vC}, 3, v{vB}")
            g(f"v_add_u32 v{vA}, v{vA}, v{vC}")
            g(f"v_mul_u32_u24 v{vA}, 1280, v{vA}")
            g(f"v_add_u32 v{vWo[u]}, v{vWo[u]}, v{vA}")
        g(f"s_lshl_b32 s{sC}, s{sU}, 10")
        g("s_waitcnt lgkmcnt(0)")
        if k.stamps: k.names["G2"] = ["rstart", "start", "bar0"]
        if k.stamps: g(f"s_memtime s[{STB+4}:{STB+5}]")
        g(f"s_and_b32 s{sA}, s{sJ}, 1"); g(f"s_cmp_eq_u32 s{sA}, 1")
        g(f"s_cselect_b32 s{sKV}, s{sKA+6}, s{sKA+4}")
        g(f"s_cselect_b32 s{sKV+1}, s{sKA+7}, s{sKA+5}")
        g(f"s_and_b32 s{sKV+1}, s{sKV+1}, 0xffff")
        g(f"s_mov_b32 s{sKV+2}, {D*DH*2}"); g(f"s_mov_b32 s{sKV+3}, 0x20000")
        g(f"s_mov_b32 s{sA}, s{sC}")
        for nn in range(9):
            if nn == 8: g(f"s_cmp_lg_u32 s{sU}, 0"); g("s_cbranch_scc1 L_wkv_e")
            g(f"s_add_u32 m0, s{sC}, {L_WKV + nn*3072}")
            if nn: g(f"s_add_u32 s{sA}, s{sA}, 3072")
            else: g("s_nop 0")
            g(f"buffer_load_dwordx4 v{vL}, {S(sKV,4)}, s{sA} offen lds")
        g.label("L_wkv_e")
        g("s_barrier")
        srd(g, sWS, sPtr, sPtr+1, WS_SIZE)
        g(f"s_load_dword s{sNon}, {S(sPtr,2)}, {WS_NONCE}")
    else:
        if k.stamps: k.names["G2"] = ["rstart", "start", "bar0"]
        if not k.kvself and not k.near:
            g(f"s_and_b32 s{sM}, s{sI}, 3"); g(f"s_lshl_b32 s{sM}, s{sM}, 2"); g(f"s_lshr_b32 s{sA}, s{sJ}, 1")
            g(f"s_add_u32 s{sM}, s{sM}, s{sA}"); g(f"s_lshr_b32 s{sM}, s{sM}, 1")
            if k.xrot2:
                g(f"s_add_u32 s{sM}, s{sM}, s{sXc}"); g(f"s_cmp_ge_u32 s{sM}, 9"); g(f"s_cselect_b32 s{sA}, 9, 0"); g(f"s_sub_u32 s{sM}, s{sM}, s{sA}")
            g(f"s_and_b32 s{sA}, s{sJ}, 1"); g(f"s_cmp_eq_u32 s{sA}, 1")
            g(f"s_cselect_b32 s{sKV}, s{sKA+6}, s{sKA+4}")
            g(f"s_cselect_b32 s{sKV+1}, s{sKA+7}, s{sKA+5}")
            g(f"s_and_b32 s{sKV+1}, s{sKV+1}, 0xffff")
            g(f"s_mov_b32 s{sKV+2}, {D*DH*2}"); g(f"s_mov_b32 s{sKV+3}, 0x20000")
            g(f"s_mov_b32 s{sCt}, 9")
            g.label("L_wkv")
            g(f"s_mul_i32 s{sA}, s{sM}, 3"); g(f"s_add_u32 s{sA}, s{sA}, s{sU}")
            g(f"s_cmp_ge_u32 s{sA}, 25"); g("s_cbranch_scc1 L_wkv_s")
            g(f"s_lshl_b32 s{sA}, s{sA}, 10")
            g(f"s_add_u32 m0, s{sA}, {L_WKV}")
            g("s_nop 0")
            g(f"buffer_load_dwordx4 v{vL}, {S(sKV,4)}, s{sA} offen lds")
            g.label("L_wkv_s")
            g(f"s_add_u32 s{sM}, s{sM}, 1"); g(f"s_cmp_eq_u32 s{sM}, 9"); g(f"s_cselect_b32 s{sM}, 0, s{sM}")
            g(f"s_sub_u32 s{sCt}, s{sCt}, 1"); g(f"s_cmp_lg_u32 s{sCt}, 0"); g("s_cbranch_scc1 L_wkv")
            if k.kvprio: g("s_setprio 0")
        for u in range(5):
            g(f"v_add_u32 v{vA}, {64*u}, v0")
            g(f"v_mul_u32_u24 v{vB}, 52429, v{vA}")
            g(f"v_lshrrev_b32 v{vB}, 19, v{vB}")
            g(f"v_mul_u32_u24 v{vC}, 10, v{vB}")
            g(f"v_sub_u32 v{vA}, v{vA}, v{vC}")
            g(f"v_lshlrev_b32 v{vWo[u]}, 4, v{vA}")
            g(f"v_bfe_u32 v{vA}, v{vB}, 2, 2")
            g(f"v_lshlrev_b32 v{vA}, 3, v{vA}")
            g(f"v_lshrrev_b32 v{vC}, 4, v{vB}")
            g(f"v_lshl_add_u32 v{vA}, v{vC}, 2, v{vA}")
            g(f"v_and_b32 v{vC}, 3, v{vB}")
            g(f"v_add_u32 v{vA}, v{vA}, v{vC}")
            g(f"v_mul_u32_u24 v{vA}, 1280, v{vA}")
            g(f"v_add_u32 v{vWo[u]}, v{vWo[u]}, v{vA}")
    srd(g, sWQ, sKA+2, sKA+3, D*D*2)
    srd(g, sW1, sKA+8, sKA+9, S_TOK*F*2)
    if k.xrot2: g(f"s_add_u32 s{sM}, s{sI}, s{sXc}"); g(f"s_and_b32 s{sM}, s{sM}, 3")
    else: g(f"s_and_b32 s{sM}, s{sI}, 3")
    g(f"s_mul_i32 s{sM}, s{sM}, 5"); g(f"s_add_u32 s{sM}, s{sM}, s{sU}")
    g(f"s_mul_i32 s{sC}, s{sJ}, 160")
    sSl = ds()
    g(f"s_mov_b32 s{sSl}, s{sU}")
    def wq_block():
        g(f"s_cmp_ge_u32 s{sM}, 20"); g(f"s_cselect_b32 s{sA}, 20, 0"); g(f"s_sub_u32 s{sM}, s{sM}, s{sA}")
        g(f"s_mul_i32 s{sB}, s{sM}, 40960"); g(f"s_add_u32 s{sB}, s{sB}, s{sC}")
        if prog: g(f"s_mul_i32 s{sA}, s{sSl}, 5120")
        else:    g(f"s_mul_i32 s{sA}, s{sM}, 5120")
        for u in range(5):
            g(f"s_add_u32 m0, s{sA}, {L_WQ + u*1024}")
            g("s_nop 0")
            g(f"buffer_load_dwordx4 v{vWo[u]}, {S(sWQ,4)}, s{sB} offen lds")
        g(f"s_add_u32 s{sM}, s{sM}, 3"); g(f"s_add_u32 s{sSl}, s{sSl}, 3")
    if k.kvself: lds_spin(k, vCn2, CNT_KVI, vA, sA, sB, 1)
    if k.stage:
        if k.kvdiag: g(f"s_memtime s[{STB+12}:{STB+13}]")
        g("s_waitcnt vmcnt(0)")
        if k.kvdiag: g(f"s_memtime s[{STB+14}:{STB+15}]")
        lds_signal(g, vCn2, vOn2, CNT_WKV)
        lds_spin(k, vCn2, CNT_X0, vA, sA, sB, 1)
    wq_block()
    if not k.kvself and not k.stage:
        g("s_waitcnt vmcnt(5)")
    k.stamp("G2", "wkvland")
    if not k.kvself and not k.stage: lds_signal(g, vCn2, vOn2, CNT_WKV)
    g(f"s_mov_b32 s{sCt}, 4")
    g.label("L_wq")
    wq_block()
    g(f"s_sub_u32 s{sCt}, s{sCt}, 1"); g(f"s_cmp_lg_u32 s{sCt}, 0"); g("s_cbranch_scc1 L_wq")
    g("s_waitcnt vmcnt(10)")
    lds_signal(g, vCn2, vOn2, CNT_WQA)
    wq_block()
    g(f"s_cmp_eq_u32 s{sU}, 2"); g("s_cbranch_scc1 L_wq_last")
    wq_block()
    g.label("L_wq_last")
    g("s_waitcnt vmcnt(5)")
    lds_signal(g, vCn2, vOn2, CNT_WQB)
    k.stamp("G2", "dmaiss")
    g("s_waitcnt vmcnt(0) lgkmcnt(0)")
    nonce_hash(g)
    lds_signal(g, vCn2, vOn2, CNT_WQ)
    k.stamp("G2", "dmaland")
    g(f"s_lshl_b32 s{sA}, s{sN}, 6")
    g(f"v_add_u32 v{vA}, s{sA}, v0")
    g(f"v_mul_u32_u24 v{vA}, {F*2}, v{vA}")
    g(f"s_and_b32 s{sB}, s{sXc}, 3"); g(f"s_mul_i32 s{sB}, s{sB}, 768")
    g(f"s_lshl_b32 s{sA}, s{sU}, 8"); g(f"s_add_u32 s{sB}, s{sB}, s{sA}")
    for q in range(2 if w1probe else 0):
        g(f"buffer_load_dword v255, v{vA}, {S(sW1,4)}, s{sB} offen offset:{128*q}")
    if k.gpoll:
        g(f"s_cmp_lg_u32 s{sW}, 4"); g("s_cbranch_scc1 L_nopoll")
        vF4 = da(4, 4)
        g(f"v_lshlrev_b32 v{vA}, {FSH}, v0")
        g(f"s_mov_b32 s{sA}, {WS_KVF}")
        if k.pack4: poll_flags(k, vA, f"s{sA}", vF4, 4, sB, sleep=ksleep)
        else: poll_flags4(k, vA, sA, vF4, sB, sC, sleep=ksleep)
        if k.nobar: lds_signal(g, vCn2, vOn2, CNT_KVF)
        g.label("L_nopoll")
    if not k.nobar: g("s_barrier")
    g("s_branch L_gemm")
    if k.lay:
        k.deferred = g.L; g.L = main_lines

def attention(k, niter=8, pos=0, kvrot=1):
    g = k.g
    va = Alloc(1, 255, "v"); sa = Alloc(SFREE+2, STB, "s")
    QloA = va(4,4); QloB = va(4,4); QhiA = va(2,2); QhiB = va(2,2)
    KB = [(va(4,4), va(2,2)) for _ in range(2)]
    VB = [va(8,4) for _ in range(2)]
    SA = va(16,4); SB = va(16,4); PA = va(8,4); PB = va(8,4); OA = va(16,4); OB = va(16,4)
    vKlo = va(); vKhi = va(); vV = va(); vL16 = va(); vCnt = va(); vOne = va()
    vT0 = va(); vT1 = va(); vT2 = va(); vT3 = va(); vC = va(2,2); vKm = va(2,2); vF = va(4,4)
    vAd = [va() for _ in range(5)]; vSig = va()
    sT0 = sa(); sT1 = sa(); sT2 = sa(); sIt = sa(); sTgt = sa(); sQ = sa(); sDm = sa(); sInc = sa(); sSp = sa(); sIdx = sa(); sCn = sa(); sIncW = sa(); sIncN = sa()
    dma_first = k.dfirst and k.gpoll and not k.nobar
    def issue_kv():
        k.stamp("A", "kvflags")
        g(f"v_lshlrev_b32 v{vT0}, 3, v0")
        g(f"s_mov_b32 s{sT1}, {WS_KMAX}")
        g(f"buffer_load_dwordx2 {V(vKm,2)}, v{vT0}, {S(sWS,4)}, s{sT1} offen sc1")
        def kv_dma(c):
            if kvrot:
                t = k.tag("dm")
                g(f"s_mov_b32 s{sCn}, 11")
                g.label(f"L_{t}")
                g(f"s_lshl_b32 s{sT0}, s{sIdx}, 2"); g(f"s_add_u32 s{sT0}, s{sT0}, s{sW}")
                g(f"s_cmp_ge_u32 s{sT0}, 42"); g(f"s_cbranch_scc1 L_{t}_s")
                g(f"s_lshl_b32 s{sT0}, s{sT0}, 10")
                g(f"s_add_u32 m0, s{sT0}, {L_KV + c*CHUNK}")
                g(f"s_add_u32 s{sT1}, s{sT0}, {WS_KV + c*CHUNK}")
                g(f"buffer_load_dwordx4 v{vL16}, {S(sWS,4)}, s{sT1} offen sc1 lds")
                g.label(f"L_{t}_s")
                g(f"s_add_u32 s{sIdx}, s{sIdx}, 1"); g(f"s_cmp_eq_u32 s{sIdx}, 11"); g(f"s_cselect_b32 s{sIdx}, 0, s{sIdx}")
                g(f"s_sub_u32 s{sCn}, s{sCn}, 1"); g(f"s_cmp_lg_u32 s{sCn}, 0"); g(f"s_cbranch_scc1 L_{t}")
            else:
                t = k.tag("dm")
                g(f"s_lshl_b32 s{sT0}, s{sW}, 10"); g(f"s_add_u32 s{sT1}, s{sT0}, {WS_KV + c*CHUNK}")
                for nn in range(11):
                    if nn == 10: g(f"s_cmp_ge_u32 s{sW}, 2"); g(f"s_cbranch_scc1 L_{t}")
                    g(f"s_add_u32 m0, s{sT0}, {L_KV + c*CHUNK + nn*4096}")
                    if nn: g(f"s_add_u32 s{sT1}, s{sT1}, 4096")
                    else: g("s_nop 0")
                    g(f"buffer_load_dwordx4 v{vL16}, {S(sWS,4)}, s{sT1} offen sc1 lds")
                g.label(f"L_{t}")
        g(f"s_mul_i32 s{sIdx}, s{sN}, 47"); g(f"s_lshr_b32 s{sIdx}, s{sIdx}, 9")
        g(f"s_mul_i32 s{sIdx}, s{sIdx}, 11"); g(f"s_sub_u32 s{sIdx}, s{sN}, s{sIdx}")
        kv_dma(0)
        if k.gate2 == 2: lds_signal(g, vCnt, vOne, CNT_GATE)
        kv_dma(1)
        if k.gate2 == 1: lds_signal(g, vCnt, vOne, CNT_GATE)
        if k.kvprobe:
            g(f"s_cmp_lg_u32 s{sW}, 0"); g("s_cbranch_scc1 L_att_nopr")
            g(f"s_mul_i32 s{sT0}, s{sN}, {21*128}"); g(f"s_add_u32 s{sT0}, s{sT0}, {WS_KV + 2*CHUNK}")
            g(f"v_lshlrev_b32 v{vT0}, 7, v0")
            g("s_mov_b64 exec, 0x1fffff")
            g(f"buffer_load_dword v255, v{vT0}, {S(sWS,4)}, s{sT0} offen")
            g("s_mov_b64 exec, -1")
            g.label("L_att_nopr")
    g.label("L_attn")
    g(f"v_lshlrev_b32 v{vL16}, 4, v0")
    if dma_first:
        g(f"v_mov_b32 v{vCnt}, {L_CNT}"); g(f"v_mov_b32 v{vOne}, 1")
        issue_kv()
    g(f"s_mov_b32 s{sIncW}, {(-3*8*KV_TILE) & 0xffffffff}"); g(f"s_mov_b32 s{sIncN}, {8*KV_TILE}")
    g(f"s_mul_i32 s{sT0}, s{sW}, 2560"); g(f"s_add_u32 s{sT0}, s{sT0}, {L_QX}")
    g(f"v_add_u32 v{vT0}, s{sT0}, v{vL16}")
    g(f"v_and_b32 v{vT1}, 31, v0")
    g(f"v_lshlrev_b32 v{vT2}, 3, v{vT1}")
    g(f"v_add_u32 v{vT2}, s{sT0}, v{vT2}")
    g(f"ds_read_b128 {V(QloA,4)}, v{vT0}")
    g(f"ds_read_b128 {V(QloB,4)}, v{vT0} offset:1280")
    g(f"ds_read_b64 {V(QhiA,2)}, v{vT2} offset:1024")
    g(f"ds_read_b64 {V(QhiB,2)}, v{vT2} offset:2304")
    g(f"v_mov_b32 v{vKlo}, v{vL16}")
    g(f"v_and_b32 v{vT0}, 31, v0")
    g(f"v_lshlrev_b32 v{vKhi}, 3, v{vT0}")
    g(f"v_add_u32 v{vKhi}, {KV_KHI}, v{vKhi}")
    g(f"v_mov_b32 v{vT1}, {KV_V + ONES_SLOT*16}")
    g(f"v_cmp_le_u32 vcc, 32, v0"); g.nop(2)
    g(f"v_cndmask_b32 v{vKhi}, v{vKhi}, v{vT1}, vcc")
    g(f"v_lshrrev_b32 v{vT1}, 3, v{vT0}")
    g(f"v_and_b32 v{vT2}, 3, v{vT0}")
    g(f"v_lshl_add_u32 v{vT1}, v{vT1}, 2, v{vT2}")
    g(f"v_bfe_u32 v{vT2}, v{vT0}, 2, 1")
    g(f"v_mul_u32_u24 v{vT2}, 10, v{vT2}")
    g(f"v_add_u32 v{vT2}, v{vT2}, v{vT1}")
    g(f"v_add_u32 v{vT3}, 7, v{vT2}")
    g(f"v_cmp_gt_u32 vcc, 4, v{vT2}"); g.nop(2)
    g(f"v_cndmask_b32 v{vT3}, v{vT3}, v{vT2}, vcc")
    g(f"v_subrev_u32 v{vC}, 10, v{vT2}")
    g(f"v_cmp_le_u32 vcc, 14, v{vT2}"); g.nop(2)
    g(f"v_cndmask_b32 v{vT3}, v{vT3}, v{vC}, vcc")
    g(f"v_mov_b32 v{vC}, {ONES_SLOT}")
    g(f"v_cmp_eq_u32 vcc, 10, v{vT1}"); g.nop(2)
    g(f"v_cndmask_b32 v{vT3}, v{vT3}, v{vC}, vcc")
    g(f"v_mov_b32 v{vC}, {ZERO_SLOT}")
    g(f"v_cmp_lt_u32 vcc, 10, v{vT1}"); g.nop(2)
    g(f"v_cndmask_b32 v{vT3}, v{vT3}, v{vC}, vcc")
    g(f"v_lshrrev_b32 v{vT2}, 5, v0")
    g(f"v_mul_u32_u24 v{vT2}, {V_KH}, v{vT2}")
    g(f"v_lshl_add_u32 v{vV}, v{vT3}, 4, v{vT2}")
    g(f"v_add_u32 v{vV}, {KV_V}, v{vV}")
    g(f"v_mov_b32 v{vCnt}, {L_CNT}")
    g(f"v_mov_b32 v{vOne}, 1")
    for r in range(16): g(f"v_mov_b32 v{OA+r}, 0"); g(f"v_mov_b32 v{OB+r}, 0")
    for r in range(8): g(f"v_mov_b32 v{PB+r}, 0"); g(f"v_mov_b32 v{VB[1]+r}, 0")
    g(f"v_and_b32 v{vT0}, 31, v0")
    g(f"v_lshrrev_b32 v{vT1}, 5, v0")
    g(f"s_mul_i32 s{sT0}, s{sW}, 20")
    g(f"v_mul_u32_u24 v{vT1}, 10, v{vT1}")
    g(f"v_add_u32 v{vT1}, s{sT0}, v{vT1}")
    for u in range(5):
        g(f"v_add_u32 v{vT2}, {2*u}, v{vT1}")
        g(f"v_lshrrev_b32 v{vT3}, 3, v{vT2}")
        g(f"v_lshlrev_b32 v{vT3}, 9, v{vT3}")
        g(f"v_lshl_add_u32 v{vT3}, v{vT0}, 4, v{vT3}")
        g(f"v_and_b32 v{vT2}, 7, v{vT2}")
        g(f"v_lshl_add_u32 v{vAd[u]}, v{vT2}, 1, v{vT3}")
        g(f"v_add_u32 v{vAd[u]}, {L_OA}, v{vAd[u]}")
    g("s_waitcnt lgkmcnt(0)")
    g("s_mov_b32 exec_lo, 0")
    for r in range(2): g(f"v_mov_b32 v{QhiA+r}, 0"); g(f"v_mov_b32 v{QhiB+r}, 0")
    g("s_mov_b32 exec_lo, -1")
    g(f"v_mov_b32 v{vCnt}, {L_CNT}"); g(f"v_mov_b32 v{vOne}, 1")
    if k.nobar: lds_spin(k, vCnt, CNT_KVF, vC, sT2, sSp, 1)
    if not k.gpoll:
        g(f"v_lshlrev_b32 v{vT0}, {FSH}, v0")
        g(f"s_lshl_b32 s{sT1}, s{sW}, {6+FSH}"); g(f"s_add_u32 s{sT1}, s{sT1}, {WS_KVF}")
        poll_flags(k, vT0, f"s{sT1}", vF, 1, sCn)
        lds_signal(g, vCnt, vOne, CNT_KVF)
        lds_spin(k, vCnt, CNT_KVF, vC, sT2, sSp, 4)
    if not dma_first: issue_kv()
    g("s_waitcnt vmcnt(20)")
    g(f"v_max_f32 v{vKm}, v{vKm}, v{vKm+1}")
    for rot in (8, 4, 2, 1):
        g.nop(2); g(f"v_max_f32_dpp v{vKm}, v{vKm}, v{vKm} row_ror:{rot} row_mask:0xf bank_mask:0xf")
    xreduce(g, vKm, vT0, "v_max_f32")
    for (lo, hi, dst) in ((QloA, QhiA, vT1), (QloB, QhiB, vT2)):
        g(f"v_mov_b32 v{dst}, 0")
        for r in range(4): g(f"v_dot2c_f32_bf16 v{dst}, v{lo+r}, v{lo+r}")
        for r in range(2): g(f"v_dot2c_f32_bf16 v{dst}, v{hi+r}, v{hi+r}")
        g.nop(3)
        xreduce(g, dst, vT0, "v_add_f32", (32,))
    g(f"v_max_f32 v{vT1}, v{vT1}, v{vT2}")
    g(f"v_mul_f32 v{vT1}, v{vT1}, v{vKm}")
    g(f"v_mov_b32 v{vT2}, {f32(TBOUND2)}")
    g(f"v_cmp_nle_f32 vcc, v{vT1}, v{vT2}")
    g.nop(5)
    if k.lay:
        g("s_cbranch_vccnz L_att_slow")
        g.label("L_att_fast")
        fast_lines = g.L; g.L = []
        g.label("L_att_slow")
    else:
        g("s_cbranch_vccz L_att_fast")
    vMA = vT1; vMB = vT2
    g(f"v_mov_b32 v{vMA}, 0xff800000"); g(f"v_mov_b32 v{vMB}, 0xff800000")
    g(f"s_mov_b32 s{sT2}, {WS_KV}"); g(f"s_mov_b32 s{sIt}, 64")
    g.label("L_att_smax")
    g(f"buffer_load_dwordx4 {V(KB[0][0],4)}, v{vKlo}, {S(sWS,4)}, s{sT2} offen sc1")
    g(f"buffer_load_dwordx2 {V(KB[0][1],2)}, v{vKhi}, {S(sWS,4)}, s{sT2} offen sc1")
    g("s_waitcnt vmcnt(0)")
    g(f"v_mfma_f32_32x32x16_bf16 {V(SA,16)}, {V(KB[0][0],4)}, {V(QloA,4)}, 0")
    g(f"v_mfma_f32_32x32x16_bf16 {V(SB,16)}, {V(KB[0][0],4)}, {V(QloB,4)}, 0")
    g(f"v_mfma_f32_32x32x8_bf16 {V(SA,16)}, {V(KB[0][1],2)}, {V(QhiA,2)}, {V(SA,16)}")
    g(f"v_mfma_f32_32x32x8_bf16 {V(SB,16)}, {V(KB[0][1],2)}, {V(QhiB,2)}, {V(SB,16)}")
    g.nop(16)
    for r in range(0, 16, 2):
        g(f"v_max3_f32 v{vMA}, v{SA+r}, v{SA+r+1}, v{vMA}")
        g(f"v_max3_f32 v{vMB}, v{SB+r}, v{SB+r+1}, v{vMB}")
    g(f"s_add_u32 s{sT2}, s{sT2}, {KV_TILE}")
    g(f"s_sub_u32 s{sIt}, s{sIt}, 1"); g(f"s_cmp_lg_u32 s{sIt}, 0")
    g("s_cbranch_scc1 L_att_smax")
    for (m, hi) in ((vMA, QhiA), (vMB, QhiB)):
        xreduce(g, m, vT0, "v_max_f32", (32,))
        g(f"v_xor_b32 v{m}, 0x80000000, v{m}")
        g(f"v_and_b32 v{vT3}, 0xffff0000, v{m}")
        g(f"v_sub_f32 v{m}, v{m}, v{vT3}")
        g(f"v_and_b32 v{vC}, 0xffff0000, v{m}")
        g(f"v_sub_f32 v{m}, v{m}, v{vC}")
        g(f"v_lshrrev_b32 v{vT3}, 16, v{vT3}")
        g(f"v_or_b32 v{vT3}, v{vT3}, v{vC}")
        g(f"v_lshrrev_b32 v{m}, 16, v{m}")
        g("s_mov_b32 exec_lo, 0")
        g(f"v_mov_b32 v{hi}, v{vT3}"); g(f"v_mov_b32 v{hi+1}, v{m}")
        g("s_mov_b32 exec_lo, -1")
    if k.lay:
        g("s_branch L_att_fast")
        slow_lines = g.L; g.L = fast_lines
    else:
        g.label("L_att_fast")
    g(f"s_waitcnt vmcnt({14 if k.estart else 10})")
    lds_signal(g, vCnt, vOne, CNT_RD0)
    lds_spin(k, vCnt, CNT_RD0, vC, sT2, sSp, 4)
    k.stamp("A", "kv0"); k.stamp("A", "rkv0", real=True)
    def rd_k(p, off):
        g(f"ds_read_b128 {V(KB[p][0],4)}, v{vKlo} offset:{off}")
        g(f"ds_read_b64 {V(KB[p][1],2)}, v{vKhi} offset:{off}")
    def rd_v(p, off):
        g(f"ds_read_b128 {V(VB[p],4)}, v{vV} offset:{off}")
        g(f"ds_read_b128 {V(VB[p]+4,4)}, v{vV} offset:{off+V_JJ}")
    def qk(Sr, Qlo, Qhi, p):
        return [f"v_mfma_f32_32x32x16_bf16 {V(Sr,16)}, {V(KB[p][0],4)}, {V(Qlo,4)}, 0",
                f"v_mfma_f32_32x32x8_bf16 {V(Sr,16)}, {V(KB[p][1],2)}, {V(Qhi,2)}, {V(Sr,16)}"]
    def pv(O, P, p):
        return [f"v_mfma_f32_32x32x16_bf16 {V(O,16)}, {V(VB[p],4)}, {V(P,4)}, {V(O,16)}",
                f"v_mfma_f32_32x32x16_bf16 {V(O,16)}, {V(VB[p]+4,4)}, {V(P+4,4)}, {V(O,16)}"]
    def ex(Sr, P):
        e = [f"v_exp_f32 v{Sr+r}, v{Sr+r}" for r in range(16)]
        c = [f"v_cvt_pk_bf16_f32 v{P+kk}, v{Sr+2*kk}, v{Sr+2*kk+1}" for kk in range(8)]
        if pos >= 7: return e, c
        seq = [e[0], e[1]]
        for kk in range(7): seq += [e[2*kk+2], c[kk], e[2*kk+3]]
        return seq, [c[7]]
    POS = {0: (5, 11, 17), 1: (3, 12, 15), 2: (3, 6, 9), 3: (4, 12, 16), 4: (4, 9, 13), 5: (4, 8, 12), 6: (5, 9, 13), 7: (3, 7, 10), 8: (3, 10, 13)}[pos]
    def phase(valu, pend, mf):
        out = []
        if pend: out += pend
        out.append(mf[0]); out += valu[0:POS[0]]; out.append(mf[1]); out += valu[POS[0]:POS[1]]; out.append(mf[2])
        out += valu[POS[1]:POS[2]]; out.append(mf[3]); out += valu[POS[2]:]
        for x in out: g(x)
    rd_k(0, 0)
    g("s_waitcnt lgkmcnt(0)")
    for x in qk(SA, QloA, QhiA, 0): g(x)
    g(f"s_mov_b32 s{sIt}, 0")
    g(f"s_mov_b32 s{sTgt}, 4")
    g(f"v_lshlrev_b32 v{vSig}, 2, v0"); g(f"v_add_u32 v{vSig}, {L_SCR}, v{vSig}")
    g(f"v_cmp_eq_u32 vcc, 0, v0"); g.nop(2)
    g(f"v_cndmask_b32 v{vSig}, v{vSig}, v{vCnt}, vcc")
    g.nop(7)
    if k.aprio: g(f"s_setprio {k.aprio}")
    g.raw(".p2align 6")
    g.label("L_att_loop")
    g(f"s_bitcmp1_b32 0x88, s{sIt}")
    g(f"s_cselect_b32 s{sInc}, s{sIncW}, s{sIncN}")
    pend = None
    for t in range(8):
        p = t % 2
        if t == 4:
            if k.estart:
                g(f"s_cmp_eq_u32 s{sIt}, 0"); g("s_cbranch_scc1 L_att_w0")
            g("s_waitcnt vmcnt(0)")
            if k.estart: g.label("L_att_w0_ret")
            g(f"ds_add_u32 v{vSig}, v{vOne} offset:{CNT_READY}")
        if t == 5:
            g(f"s_bitcmp1_b32 {0 if k.exp_nodma else 0x14}, s{sIt}")
            g("s_cbranch_scc1 L_att_dma")
            g.label("L_att_dma_ret")
        if t == 7:
            g(f"v_readfirstlane_b32 s{sT2}, v{vC}")
            g(f"s_cmp_ge_u32 s{sT2}, s{sTgt}")
            g("s_cbranch_scc0 L_att_rdy")
            g.label("L_att_rdy_ret")
        if t == 7:
            g(f"v_add_u32 v{vKlo}, s{sInc}, v{vKlo}"); g(f"v_add_u32 v{vKhi}, s{sInc}, v{vKhi}")
            rd_k(1-p, 0)
        else:
            rd_k(1-p, (t+1)*KV_TILE)
        rd_v(p, t*KV_TILE)
        if t == 7: g(f"v_add_u32 v{vV}, s{sInc}, v{vV}")
        if t == 6: g(f"ds_read_b32 v{vC}, v{vCnt} offset:{CNT_READY}")
        va_, lastA = ex(SA, PA)
        phase(va_, pend, qk(SB, QloB, QhiB, p) + pv(OB, PB, 1-p))
        pend = lastA
        g("s_waitcnt lgkmcnt(0)")
        if t == 7: g(f"ds_add_u32 v{vSig}, v{vOne} offset:{CNT_FREE}")
        vb_, lastB = ex(SB, PB)
        phase(vb_, pend, qk(SA, QloA, QhiA, 1-p) + pv(OA, PA, p))
        pend = lastB
    g(f"s_add_u32 s{sIt}, s{sIt}, 1")
    for x in pend: g(x)
    g(f"s_add_u32 s{sTgt}, s{sTgt}, 4")
    g(f"s_cmp_lt_u32 s{sIt}, {niter}")
    g("s_cbranch_scc1 L_att_loop")
    g("s_branch L_att_fin")
    g.label("L_att_dma")
    if k.dprio: g(f"s_setprio {k.dprio}")
    g(f"s_lshl_b32 s{sDm}, s{sIt}, 2")
    lds_spin(k, vCnt, CNT_FREE, vT0, sT2, sSp, f"s{sDm}")
    g(f"s_lshr_b32 s{sT0}, s{sIt}, 1"); g(f"s_add_u32 s{sT0}, s{sT0}, 1")
    g(f"s_mul_i32 s{sDm}, s{sT0}, {CHUNK}"); g(f"s_add_u32 s{sDm}, s{sDm}, {WS_KV}")
    g(f"s_and_b32 s{sT0}, s{sT0}, 1"); g(f"s_mul_i32 s{sT2}, s{sT0}, {CHUNK}")
    g(f"s_lshl_b32 s{sT0}, s{sW}, 10")
    g(f"s_add_u32 s{sDm}, s{sDm}, s{sT0}"); g(f"s_add_u32 s{sT2}, s{sT2}, s{sT0}")
    for nn in range(10):
        g(f"s_add_u32 m0, s{sT2}, {L_KV + nn*4096}")
        if nn: g(f"s_add_u32 s{sDm}, s{sDm}, 4096")
        else: g("s_nop 0")
        g(f"buffer_load_dwordx4 v{vL16}, {S(sWS,4)}, s{sDm} offen sc1 lds")
    g(f"s_cmp_ge_u32 s{sW}, 2"); g("s_cbranch_scc1 L_att_dma_x")
    g(f"s_add_u32 m0, s{sT2}, {L_KV + 10*4096}")
    g(f"s_add_u32 s{sDm}, s{sDm}, 4096")
    g(f"buffer_load_dwordx4 v{vL16}, {S(sWS,4)}, s{sDm} offen sc1 lds")
    g.label("L_att_dma_x")
    if k.dprio: g(f"s_setprio {k.aprio}")
    g("s_branch L_att_dma_ret")
    if k.estart:
        g.label("L_att_w0")
        g("s_waitcnt vmcnt(10)")
        g("s_branch L_att_w0_ret")
    g.label("L_att_rdy")
    lds_spin(k, vCnt, CNT_READY, vT0, sT2, sSp, f"s{sTgt}")
    g("s_branch L_att_rdy_ret")
    g.label("L_att_fin")
    k.stamp("A", "loopend"); k.stamp("A", "rloopend", real=True)
    g.nop(1)
    for x in pv(OB, PB, 1): g(x)
    g.nop(8)
    g.nop(4)
    for ss, O in ((0, OA), (1, OB)):
        g(f"v_rcp_f32 v{vT2}, v{O+10}"); g.nop(1)
        for r in range(10): g(f"v_mul_f32 v{O+r}, v{O+r}, v{vT2}")
        for u in range(5): g(f"v_cvt_pk_bf16_f32 v{O+u}, v{O+2*u}, v{O+2*u+1}")
        for u in range(5): g(f"ds_write_b32 v{vAd[u]}, v{O+u} offset:{ss*5120}")
    g("s_waitcnt lgkmcnt(0)")
    lds_signal(g, vCnt, vOne, CNT_OAS)
    lds_spin(k, vCnt, CNT_OAS, vC, sT2, sSp, 4)
    g(f"s_mul_i32 s{sQ}, s{sI}, 80"); g(f"s_mul_i32 s{sT0}, s{sJ}, 5"); g(f"s_add_u32 s{sQ}, s{sQ}, s{sT0}")
    g(f"s_lshl_b32 s{sQ}, s{sQ}, 10"); g(f"s_add_u32 s{sQ}, s{sQ}, {WS_OF}")
    g(f"s_lshl_b32 s{sT1}, s{sW}, 10")
    g(f"v_add_u32 v{vT0}, s{sT1}, v{vL16}")
    g(f"v_add_u32 v{vT0}, {L_OA}, v{vT0}")
    for nn in range(3): g(f"ds_read_b128 {V(SA+4*nn,4)}, v{vT0} offset:{4096*nn}")
    sO = [sT1, sT2, sDm]
    for nn in range(3):
        g(f"s_add_u32 s{sT0}, s{sW}, {4*nn}")
        g(f"s_cmp_ge_u32 s{sT0}, 5"); g(f"s_cselect_b32 s{sTgt}, {40960-5120}, 0")
        g(f"s_lshl_b32 s{sT0}, s{sT0}, 10"); g(f"s_add_u32 s{sT0}, s{sT0}, s{sTgt}")
        g(f"s_add_u32 s{sO[nn]}, s{sT0}, s{sQ}")
    g("s_waitcnt lgkmcnt(0)")
    for nn in range(3):
        if nn == 2: g(f"s_cmp_ge_u32 s{sW}, 2"); g("s_cbranch_scc1 L_att_st")
        g(f"buffer_store_dwordx4 {V(SA+4*nn,4)}, v{vL16}, {S(sWS,4)}, s{sO[nn]} offen sc1")
    g.label("L_att_st")
    g(f"s_lshl_b32 s{sT0}, s{sI}, 3"); g(f"s_add_u32 s{sT0}, s{sT0}, s{sJ}"); g(f"s_lshl_b32 s{sT0}, s{sT0}, 2")
    g(f"s_add_u32 s{sT0}, s{sT0}, s{sW}"); g(f"s_lshl_b32 s{sT0}, s{sT0}, {FSH}"); g(f"s_add_u32 s{sT0}, s{sT0}, {WS_OFL}")
    g("s_waitcnt vmcnt(0)")
    write_flag(g, sT0, vT0, vT1)
    k.stamp("A", "oflag")
    g(f"s_or_b32 s{sT0}, s2, s{sW}"); g(f"s_cmp_lg_u32 s{sT0}, 0"); g("s_cbranch_scc1 L_att_end")
    g(f"s_mov_b32 s{sT0}, {WS_NONCE}")
    write_flag(g, sT0, vT0, vT1)
    g.label("L_att_end")
    if k.kvdiag:
        k.names["A"] = k.names["A"][:14]
    k.dump("A", sT0, vT0, vT1)
    if k.kvdiag:
        k.names["A"] += ["kv_wk", "kv_proj", "kv_st"]
        g("s_mov_b64 exec, 1")
        for i_ in (16, 17, 18):
            g(f"v_mov_b32 v{vT0}, s{STB+2*i_}")
            g(f"buffer_store_dword v{vT0}, v{vT1}, s[{sWS}:{sWS+3}], s{sT0} offen offset:{4*i_}")
        g("s_mov_b64 exec, -1")
    g("s_endpgm")
    if k.lay: g.L += slow_lines
    return va.p

def tr_addr_128(g, vdst0, vdst1, mode, vt0, vt1, vt2, s_ring):
    g(f"v_bfe_u32 v{vt0}, v0, 2, 2")
    g(f"v_lshrrev_b32 v{vt1}, 5, v0")
    g(f"v_lshlrev_b32 v{vt1}, {3 if mode=='nat' else 2}, v{vt1}")
    g(f"v_add_u32 v{vt1}, v{vt1}, v{vt0}")
    g(f"v_lshlrev_b32 v{vdst0}, 7, v{vt1}")
    g(f"v_bfe_u32 v{vt1}, v0, 4, 1")
    g(f"v_bfe_u32 v{vt2}, v0, 1, 1")
    g(f"v_lshl_add_u32 v{vt1}, v{vt1}, 1, v{vt2}")
    g(f"v_lshrrev_b32 v{vt0}, 1, v{vt0}")
    g(f"v_lshlrev_b32 v{vt0}, 2, v{vt0}")
    g(f"v_xor_b32 v{vt1}, v{vt1}, v{vt0}")
    g(f"v_lshl_add_u32 v{vdst0}, v{vt1}, 4, v{vdst0}")
    g(f"v_and_b32 v{vt2}, 1, v0")
    g(f"v_lshl_add_u32 v{vdst0}, v{vt2}, 3, v{vdst0}")
    g(f"v_add_u32 v{vdst0}, s{s_ring}, v{vdst0}")
    g(f"v_xor_b32 v{vdst1}, 64, v{vdst0}")

def dma_voff_128(g, vdst, pitch, vt0, vt1):
    g(f"v_lshrrev_b32 v{vt0}, 3, v0")
    g(f"v_bfe_u32 v{vt1}, v0, 4, 1")
    g(f"v_lshlrev_b32 v{vt1}, 2, v{vt1}")
    g(f"v_and_b32 v{vdst}, 7, v0")
    g(f"v_xor_b32 v{vdst}, v{vdst}, v{vt1}")
    g(f"v_lshlrev_b32 v{vdst}, 4, v{vdst}")
    g(f"v_mul_u32_u24 v{vt0}, {pitch}, v{vt0}")
    g(f"v_add_u32 v{vdst}, v{vdst}, v{vt0}")

def stream_gemm(k, tag, nsteps, depth, pitch, sT_srd, sTso, vTsrc, sRing, vTr, TB, mode,
                sDso, vDsrc, DR, nd, acc, tr_is_A, sCnt, first_zero=True, rot=None):
    g = k.g
    nv = 2 + nd
    toff = 512 if mode == "nat" else 1024
    def issue(slot):
        g(f"s_add_u32 m0, s{sRing}, {slot*2048}")
        g("s_nop 0")
        g(f"buffer_load_dwordx4 v{vTsrc}, {S(sT_srd,4)}, s{sTso} offen lds")
        g(f"s_add_u32 m0, s{sRing}, {slot*2048+1024}")
        g(f"s_add_u32 s{sTso}, s{sTso}, {8*pitch}")
        g(f"buffer_load_dwordx4 v{vTsrc}, {S(sT_srd,4)}, s{sTso} offen lds")
        g(f"s_add_u32 s{sTso}, s{sTso}, {8*pitch}")
        for b in range(nd):
            g(f"buffer_load_dwordx4 {V(DR+(slot*nd+b)*4,4)}, v{vDsrc[b]}, {S(sWS,4)}, s{sDso} offen sc1")
        g(f"s_add_u32 s{sDso}, s{sDso}, 1024")
        if rot:
            sPos, sA, sB = rot
            g(f"s_add_u32 s{sPos}, s{sPos}, 1"); g(f"s_cmp_eq_u32 s{sPos}, {nsteps}")
            g(f"s_cselect_b32 s{sA}, {nsteps*16*pitch}, 0"); g(f"s_cselect_b32 s{sB}, {nsteps*1024}, 0")
            g(f"s_cselect_b32 s{sPos}, 0, s{sPos}")
            g(f"s_sub_u32 s{sTso}, s{sTso}, s{sA}"); g(f"s_sub_u32 s{sDso}, s{sDso}, s{sB}")
    def trread(slot, buf):
        for a in range(2):
            for t in range(2):
                g(f"ds_read_b64_tr_b16 {V(TB[buf]+4*a+2*t,2)}, v{vTr[a]} offset:{slot*2048 + t*toff}")
    def mfmas(slot, buf, zero):
        for a in range(2):
            for b in range(nd):
                T = V(TB[buf]+4*a,4); Dd = V(DR+(slot*nd+b)*4,4); c = acc(a,b)
                A_, B_ = (T, Dd) if tr_is_A else (Dd, T)
                g(f"v_mfma_f32_32x32x16_bf16 {V(c,16)}, {A_}, {B_}, {'0' if zero else V(c,16)}")
    assert nsteps % depth == 0 and depth % 2 == 0
    for s in range(depth): issue(s)
    nit = nsteps // depth
    g(f"s_waitcnt vmcnt({nv*(depth-1)})")
    trread(0, 0)
    def body(last, first):
        for s in range(depth):
            nxt = (s+1) % depth
            if not (last and s == depth-1):
                g(f"s_waitcnt vmcnt({nv*(depth-2-s) if last else nv*(depth-2)})")
                trread(nxt, (s+1) % 2)
                g("s_waitcnt lgkmcnt(4)")
            else:
                g("s_waitcnt lgkmcnt(0)")
            mfmas(s, s % 2, first and first_zero and s == 0)
            if not last: issue(s)
    body(False, True); rem = nit - 2
    if rem > 0:
        g(f"s_mov_b32 s{sCnt}, {rem}")
        g.label(f"L_{tag}_loop")
        body(False, False)
        g(f"s_sub_u32 s{sCnt}, s{sCnt}, 1"); g(f"s_cmp_lg_u32 s{sCnt}, 0")
        g(f"s_cbranch_scc1 L_{tag}_loop")
    body(True, False)

def pk(op, d, a, b, c=None, sel=None):
    ops = [V(d,2), a, b] + ([c] if c else [])
    return f"v_pk_{op}_f32 " + ", ".join(ops) + (f" op_sel_hi:{sel}" if sel else "")

def gelu16(g, acc, vb, vt, sC2, vC1, vOnes):
    for r0 in range(0, 16, 8):
        ps = range(r0, r0+8, 2)
        for r in ps: g(pk("add", acc+r, V(acc+r,2), V(vb+r,2)))
        for r in ps: g(pk("mul", vt+r-r0, V(acc+r,2), V(acc+r,2)))
        for r in ps: g(pk("fma", vt+r-r0, V(vt+r-r0,2), S(sC2,2), V(vC1,2), "[1,0,0]"))
        for r in ps: g(pk("mul", vt+r-r0, V(vt+r-r0,2), V(acc+r,2)))
        for r in range(8): g(f"v_exp_f32 v{vt+r}, v{vt+r}")
        for r in ps: g(pk("add", vt+r-r0, V(vt+r-r0,2), V(vOnes,2), None, "[1,0]"))
        for r in range(8): g(f"v_rcp_f32 v{vt+r}, v{vt+r}")
        for r in ps: g(pk("mul", acc+r, V(acc+r,2), V(vt+r-r0,2)))

def div10(g, vq, vr, vin):
    g(f"v_mul_u32_u24 v{vq}, 52429, v{vin}"); g(f"v_lshrrev_b32 v{vq}, 19, v{vq}")
    g(f"v_mul_u32_u24 v{vr}, 10, v{vq}"); g(f"v_sub_u32 v{vr}, v{vin}, v{vr}")

def gemm_waves(k, prio=0, gate=True, eprio=0, e2prio=0, osleep=1, gsleep=1, d1=8, hsleep=2):
    g = k.g
    sa = Alloc(SFREE+2, STB, "s")
    sWa = sa(4); sWb = sa(4); sOut = sa(4); sP = sa(4); sP2 = sa(4); sP3 = sa(4); sC2 = sa(2)
    sG = sa(); sRing = sa(); sTso = sa(); sDso = sa(); sCnt = sa(); sFa = sa(); sDb = sa(); sFl = sa()
    sT0 = sa(); sT1 = sa(); sT2 = sa(); sSp = sa(); sXo = sa(); sWo = sa()
    g.label("L_gemm")
    k.spinsleep = k.gsleep2
    for r in ("G1", "G2"): k.fork(r, r, pad=8)
    if k.stamps and k.kvdiag and k.stage: k.names["G2"][6] = "wkv_iss"; k.names["G2"][7] = "wkv_land"
    if k.xdiag: k.names["G1"] = k.names["G1"][:8]
    if k.stamps: k.names["G"] = ["_"]*8
    def st(name, real=False): k.stamp("G", name, real)
    g(f"s_setprio {prio}")
    if k.gskip == 1: g("s_branch L_gdone")
    g(f"s_load_dwordx4 {S(sP,4)}, s[0:1], {KA_W1}")
    g(f"s_load_dwordx4 {S(sP2,4)}, s[0:1], {KA_W2}")
    g(f"s_load_dwordx2 {S(sP3,2)}, s[0:1], {KA_WO}")
    g(f"s_load_dwordx2 {S(sP3+2,2)}, s[0:1], {KA_X}")
    g(f"s_load_dwordx2 {S(sOut,2)}, s[0:1], {KA_OUT}")
    g(f"s_sub_u32 s{sG}, s{sW}, 4")
    g(f"s_mul_i32 s{sRing}, s{sG}, {RING}"); g(f"s_add_u32 s{sRing}, s{sRing}, {L_RING}")
    va = Alloc(1, 255, "v")
    vCnt = va(); vOne = va(); vL16 = va(); vt = va(8, 4); vWr = va(); vXo = va(); vO1 = va(); vB2 = va()
    RES = va(20, 4)
    vC1 = RES; vOnes = RES+2
    vTsrc1 = RES+4; vTr1 = [RES+5, RES+6]; vD1 = RES+7; vGst = RES+8; vRd = RES+9
    vTsrc2 = RES+10; vTr2 = [RES+11, RES+12]; vD2 = [vL16, RES+13, RES+14]; vGfl = RES+15; vW2p = RES+16
    vXr = va(10, 2); vWsrc = [va() for _ in range(5)]; vWtr = va()
    common_end = va.p
    g(f"s_mul_i32 s{sT1}, s{sN}, 43"); g(f"s_lshr_b32 s{sT1}, s{sT1}, 8")
    g(f"s_mul_i32 s{sT2}, s{sT1}, 6"); g(f"s_sub_u32 s{sFl}, s{sN}, s{sT2}")
    g(f"s_and_b32 s{sFa}, s{sXc}, 3"); g(f"s_mul_i32 s{sFa}, s{sFa}, 6"); g(f"s_add_u32 s{sFa}, s{sFa}, s{sFl}")
    g(f"s_lshr_b32 s{sDb}, s{sXc}, 2"); g(f"s_mul_i32 s{sDb}, s{sDb}, 5"); g(f"s_add_u32 s{sDb}, s{sDb}, s{sT1}")
    g(f"v_lshlrev_b32 v{vL16}, 4, v0")
    g(f"v_mov_b32 v{vCnt}, {L_CNT}"); g(f"v_mov_b32 v{vOne}, 1")
    if k.nobar == 2: lds_spin(k, vCnt, CNT_QX, vt+2, sT2, sSp, 4)
    if k.nobar == 3: lds_spin(k, vCnt, CNT_RD0, vt+2, sT2, sSp, 4)
    dma_voff_128(g, vTsrc1, F*2, vt, vt+1)
    tr_addr_128(g, vTr1[0], vTr1[1], "nat", vt, vt+1, vt+2, sRing)
    g(f"v_add_u32 v{vD1}, {128*1024}, v{vL16}")
    g(f"v_add_u32 v{vWr}, s{sRing}, v{vL16}")
    g(f"s_lshl_b32 s{sT1}, s{sG}, 12"); g(f"s_add_u32 s{sT1}, s{sT1}, {L_RING}")
    g(f"v_add_u32 v{vRd}, s{sT1}, v{vL16}")
    g(f"s_and_b32 s{sT1}, s{sG}, 1"); g(f"s_lshl_b32 s{sT1}, s{sT1}, 1"); g(f"s_lshl_b32 s{sT2}, s{sDb}, 2")
    g(f"s_add_u32 s{sT1}, s{sT1}, s{sT2}")
    g(f"v_bfe_u32 v{vt}, v0, 4, 1")
    g(f"v_add_u32 v{vt}, s{sT1}, v{vt}")
    g(f"v_mul_u32_u24 v{vt+1}, 52, v{vt}")
    g(f"v_lshrrev_b32 v{vt+1}, 8, v{vt+1}")
    g(f"v_mul_u32_u24 v{vt+2}, 5, v{vt+1}")
    g(f"v_sub_u32 v{vt}, v{vt}, v{vt+2}")
    g(f"v_mul_u32_u24 v{vt+1}, 3, v{vt+1}")
    g(f"v_lshrrev_b32 v{vt+2}, 1, v{vt}")
    g(f"v_add_u32 v{vt+1}, v{vt+1}, v{vt+2}")
    g(f"v_mul_u32_u24 v{vt+1}, {96*1024}, v{vt+1}")
    g(f"v_and_b32 v{vt}, 1, v{vt}")
    g(f"v_lshlrev_b32 v{vt}, 4, v{vt}")
    g(f"v_and_b32 v{vt+2}, 15, v0")
    g(f"v_add_u32 v{vt}, v{vt}, v{vt+2}")
    g(f"v_and_b32 v{vt+2}, 32, v0")
    g(f"v_add_u32 v{vt}, v{vt}, v{vt+2}")
    g(f"v_lshl_add_u32 v{vGst}, v{vt}, 4, v{vt+1}")
    c1 = -2.0*math.sqrt(2/math.pi)*1.4426950408889634
    g(f"v_mov_b32 v{vC1}, {f32(c1)}"); g(f"v_mov_b32 v{vOnes}, 1.0")
    g(f"s_mov_b32 s{sC2}, {f32(c1*0.044715)}")
    dma_voff_128(g, vTsrc2, S_TOK*2, vt, vt+1)
    tr_addr_128(g, vTr2[0], vTr2[1], "perm", vt, vt+1, vt+2, sRing)
    g(f"v_add_u32 v{vD2[1]}, {96*1024}, v{vL16}")
    g(f"v_add_u32 v{vD2[2]}, {2*96*1024}, v{vL16}")
    g(f"v_bfe_u32 v{vt}, v0, 4, 1"); g(f"v_lshlrev_b32 v{vt}, 30, v{vt}")
    g(f"v_or_b32 v{vD2[2]}, v{vD2[2]}, v{vt}")
    g(f"v_lshlrev_b32 v{vt}, {FSH}, v0")
    g(f"v_add_u32 v{vt+1}, {72 << FSH}, v{vt}")
    g(f"v_cmp_le_u32 vcc, 24, v0"); g.nop(2)
    g(f"v_cndmask_b32 v{vGfl}, v{vt}, v{vt+1}, vcc")
    g(f"v_mov_b32 v{vt+1}, 0")
    g(f"v_cmp_le_u32 vcc, 48, v0"); g.nop(2)
    g(f"v_cndmask_b32 v{vGfl}, v{vGfl}, v{vt+1}, vcc")
    g(f"s_mul_i32 s{sT1}, s{sN}, 48"); g(f"s_lshl_b32 s{sT2}, s{sG}, 4"); g(f"s_add_u32 s{sT1}, s{sT1}, s{sT2}")
    g(f"v_lshrrev_b32 v{vt}, 2, v0"); g(f"v_add_u32 v{vt}, s{sT1}, v{vt}")
    g(f"v_lshlrev_b32 v{vt}, 12, v{vt}")
    g(f"v_and_b32 v{vt+1}, 3, v0"); g(f"v_lshl_add_u32 v{vW2p}, v{vt+1}, 7, v{vt}")
    for u in range(5):
        g(f"v_add_u32 v{vt}, {64*u}, v0")
        div10(g, vt+1, vt+2, vt)
        g(f"v_lshlrev_b32 v{vWsrc[u]}, 4, v{vt+2}")
        g(f"v_mul_u32_u24 v{vt+1}, 1280, v{vt+1}")
        g(f"v_add_u32 v{vWsrc[u]}, v{vWsrc[u]}, v{vt+1}")
    g(f"v_lshrrev_b32 v{vt}, 5, v0"); g(f"v_lshlrev_b32 v{vt}, 3, v{vt}")
    g(f"v_bfe_u32 v{vt+1}, v0, 2, 2"); g(f"v_add_u32 v{vt}, v{vt}, v{vt+1}")
    g(f"v_mul_u32_u24 v{vWtr}, 160, v{vt}")
    g(f"v_bfe_u32 v{vt+1}, v0, 4, 1"); g(f"v_lshl_add_u32 v{vWtr}, v{vt+1}, 5, v{vWtr}")
    g(f"v_and_b32 v{vt+1}, 3, v0"); g(f"v_lshl_add_u32 v{vWtr}, v{vt+1}, 3, v{vWtr}")
    g(f"v_add_u32 v{vWtr}, s{sRing}, v{vWtr}")
    g(f"v_add_u32 v{vO1}, 40960, v{vL16}")
    g(f"v_and_b32 v{vt}, 31, v0"); g(f"v_mul_u32_u24 v{vXo}, 1280, v{vt}")
    g(f"v_lshrrev_b32 v{vt+1}, 5, v0"); g(f"v_lshl_add_u32 v{vXo}, v{vt+1}, 3, v{vXo}")
    g(f"s_lshl_b32 s{sT0}, s{sI}, 1"); g(f"s_lshr_b32 s{sT1}, s{sG}, 1"); g(f"s_add_u32 s{sT0}, s{sT0}, s{sT1}")
    g(f"s_lshl_b32 s{sCnt}, s{sT0}, 6")
    g(f"s_mul_i32 s{sXo}, s{sT0}, {32*1280}")
    g(f"s_mul_i32 s{sT0}, s{sJ}, 160"); g(f"s_add_u32 s{sXo}, s{sXo}, s{sT0}")
    g(f"s_and_b32 s{sT1}, s{sG}, 1"); g(f"s_mul_i32 s{sT1}, s{sT1}, 80"); g(f"s_add_u32 s{sXo}, s{sXo}, s{sT1}")
    g(f"s_mul_i32 s{sWo}, s{sG}, {160*1280}"); g(f"s_add_u32 s{sWo}, s{sWo}, s{sT0}")
    g("s_waitcnt lgkmcnt(0)")
    srd(g, sWa, sP3+2, sP3+3, S_TOK*D*2)
    for kk in range(5):
        g(f"buffer_load_dwordx2 {V(vXr+2*kk,2)}, v{vXo}, {S(sWa,4)}, s{sXo} offen offset:{16*kk}")
    srd(g, sWb, sP2+2, sP2+3, S_TOK*2)
    g(f"v_and_b32 v{vt}, 31, v0"); g(f"v_lshlrev_b32 v{vt}, 1, v{vt}")
    g(f"buffer_load_ushort v{vB2}, v{vt}, {S(sWb,4)}, s{sCnt} offen")
    g(f"s_and_b32 s{sOut+1}, s{sOut+1}, 0xffff"); g(f"s_mov_b32 s{sOut+2}, {S_TOK*D*2}"); g(f"s_mov_b32 s{sOut+3}, 0x20000")
    vm = Alloc(common_end, 255, "v")
    TB = [vm(8,4), vm(8,4)]
    DR = vm(d1*8, 4); ACC = vm(64, 4); vB = vm(16, 4); vBr = vm(8, 2)
    nv1 = vm.p
    acc = lambda a, b: ACC + (2*a+b)*16
    g(f"s_mul_i32 s{sTso}, s{sG}, {512*F*2}"); g(f"s_lshl_b32 s{sT1}, s{sFa}, 7"); g(f"s_add_u32 s{sTso}, s{sTso}, s{sT1}")
    g(f"s_lshl_b32 s{sDso}, s{sDb}, 18"); g(f"s_lshl_b32 s{sT1}, s{sG}, 15")
    g(f"s_add_u32 s{sDso}, s{sDso}, s{sT1}"); g(f"s_add_u32 s{sDso}, s{sDso}, {WS_HF}")
    srd(g, sWa, sP, sP+1, S_TOK*F*2)
    srd(g, sWb, sP+2, sP+3, F*2)
    if k.nobar:
        lds_spin(k, vCnt, CNT_HT, vt+2, sT2, sSp, 1)
        lds_spin(k, vCnt, CNT_QX, vt+2, sT2, sSp, 4)
    g(f"s_cmp_ge_u32 s{sN}, 30")
    g("s_cbranch_scc1 L_m2")
    g(f"v_lshrrev_b32 v{vt}, 5, v0"); g(f"v_lshlrev_b32 v{vt}, 3, v{vt}")
    g(f"s_lshr_b32 s{sT1}, s{sG}, 1"); g(f"s_lshl_b32 s{sT1}, s{sT1}, 6"); g(f"s_lshl_b32 s{sT2}, s{sFa}, 7")
    g(f"s_add_u32 s{sT1}, s{sT1}, s{sT2}")
    for q in range(4):
        g(f"buffer_load_dwordx2 {V(vBr+2*q,2)}, v{vt}, {S(sWb,4)}, s{sT1} offen offset:{16*q}")
    if k.pack4:
        g(f"v_and_b32 v{vt}, 15, v0"); g(f"v_lshlrev_b32 v{vt}, {FSH}, v{vt}")
        g(f"s_lshl_b32 s{sT1}, s{sG}, {4+FSH}"); g(f"s_add_u32 s{sT1}, s{sT1}, {WS_HFL}")
        poll_flags(k, vt, f"s{sT1}", vt+4, 4, sSp, sleep=hsleep)
    else:
        g(f"v_lshlrev_b32 v{vt}, {FSH}, v0")
        g(f"s_lshl_b32 s{sT1}, s{sG}, {6+FSH}"); g(f"s_add_u32 s{sT1}, s{sT1}, {WS_HFL}")
        poll_flags(k, vt, f"s{sT1}", vt+1, 1, sSp, sleep=hsleep)
    st("hflags")
    for q in range(4):
        for kk in range(2):
            g(f"v_lshlrev_b32 v{vB+4*q+2*kk}, 16, v{vBr+2*q+kk}")
            g(f"v_and_b32 v{vB+4*q+2*kk+1}, 0xffff0000, v{vBr+2*q+kk}")
    if gate: lds_spin(k, vCnt, CNT_GATE if k.gate2 else CNT_RD0, vt+2, sT2, sSp, 4)
    stream_gemm(k, "m1", 32, d1, F*2, sWa, sTso, vTsrc1, sRing, vTr1, TB, "nat", sDso, [vL16, vD1], DR, 2, acc, True, sCnt)
    st("m1k")
    g(f"s_setprio {eprio}")
    srd(g, sWa, sP2, sP2+1, F*S_TOK*2)
    g(f"s_lshl_b32 s{sT1}, s{sXc}, 9")
    g(f"s_cmp_eq_u32 s{sG}, 3"); g("s_cbranch_scc1 L_m1_np")
    g(f"buffer_load_dword v255, v{vW2p}, {S(sWa,4)}, s{sT1} offen")
    g.label("L_m1_np")
    g.nop(12)
    for tt in range(4):
        if tt == 3: g("s_waitcnt lgkmcnt(8)")
        for q in range(4): g(f"ds_write_b128 v{vWr}, {V(ACC+16*tt+4*q,4)} offset:{tt*4096 + q*1024}")
    g("s_waitcnt lgkmcnt(0)")
    lds_signal(g, vCnt, vOne, CNT_M1A)
    lds_spin(k, vCnt, CNT_M1A, vt+2, sT2, sSp, 4)
    for s_ in range(4):
        if s_ == 3: g("s_waitcnt lgkmcnt(4)")
        for q in range(4): g(f"ds_read_b128 {V(ACC+16*s_+4*q,4)}, v{vRd} offset:{s_*RING + q*1024}")
    for r in range(0, 16, 2): g(pk("add", ACC+r, V(ACC+r,2), V(ACC+16+r,2)))
    g("s_waitcnt lgkmcnt(0)")
    lds_signal(g, vCnt, vOne, CNT_M1B)
    for r in range(0, 16, 2): g(pk("add", ACC+32+r, V(ACC+32+r,2), V(ACC+48+r,2)))
    for r in range(0, 16, 2): g(pk("add", ACC+r, V(ACC+r,2), V(ACC+32+r,2)))
    gelu16(g, ACC, vB, vt, sC2, vC1, vOnes)
    for kk in range(8): g(f"v_cvt_pk_bf16_f32 v{ACC+16+kk}, v{ACC+2*kk}, v{ACC+2*kk+1}")
    g(f"s_lshr_b32 s{sT1}, s{sG}, 1"); g(f"s_lshl_b32 s{sT1}, s{sT1}, 1"); g(f"s_lshl_b32 s{sT2}, s{sFa}, 2")
    g(f"s_add_u32 s{sT1}, s{sT1}, s{sT2}"); g(f"s_lshl_b32 s{sT1}, s{sT1}, 10"); g(f"s_add_u32 s{sT1}, s{sT1}, {WS_GF}")
    g(f"buffer_store_dwordx4 {V(ACC+16,4)}, v{vGst}, {S(sWS,4)}, s{sT1} offen sc1")
    g(f"buffer_store_dwordx4 {V(ACC+20,4)}, v{vGst}, {S(sWS,4)}, s{sT1} offen offset:1024 sc1")
    g(f"s_mul_i32 s{sT0}, s{sDb}, 24"); g(f"s_add_u32 s{sT0}, s{sT0}, s{sFa}"); g(f"s_lshl_b32 s{sT0}, s{sT0}, 2")
    g(f"s_add_u32 s{sT0}, s{sT0}, s{sG}"); g(f"s_lshl_b32 s{sT0}, s{sT0}, {FSH}"); g(f"s_add_u32 s{sT0}, s{sT0}, {WS_GFL}")
    g("s_waitcnt vmcnt(0)")
    write_flag(g, sT0, vt+1, vt+2)
    st("gflag")
    g(f"s_setprio {prio}")
    lds_spin(k, vCnt, CNT_M1B, vt+2, sT2, sSp, 4)
    if k.gskip == 2: g("s_branch L_gdone")
    g.label("L_m2")
    if k.gskip == 2: g("s_branch L_gdone")
    if k.stamps:
        while len(k.names["G"]) < 11: k.names["G"].append("_")
    vb = Alloc(common_end, 255, "v")
    TB = [vb(12,4), vb(12,4)]
    DEPTH = 6
    DR = vb(80, 4); ACC = vb(96, 4)
    nv2 = vb.p
    acc = lambda a, b: ACC + (3*a+b)*16
    srd(g, sWa, sP2, sP2+1, F*S_TOK*2)
    srd(g, sWb, sP3, sP3+1, D*D*2)
    g(f"s_mul_i32 s{sTso}, s{sG}, {384*S_TOK*2}"); g(f"s_lshl_b32 s{sT1}, s{sI}, 7"); g(f"s_add_u32 s{sTso}, s{sTso}, s{sT1}")
    g(f"s_mul_i32 s{sDso}, s{sJ}, {3*96*1024}"); g(f"s_mul_i32 s{sT1}, s{sG}, {24*1024}")
    g(f"s_add_u32 s{sDso}, s{sDso}, s{sT1}"); g(f"s_add_u32 s{sDso}, s{sDso}, {WS_GF}")
    g(f"s_mul_i32 s{sT1}, s{sN}, 200"); g(f"s_lshl_b32 s{sT2}, s{sG}, 6"); g(f"s_add_u32 s{sT1}, s{sT1}, s{sT2}")
    g(f"s_lshl_b32 s{sT1}, s{sT1}, 7")
    g(f"v_lshlrev_b32 v{vt}, 3, v{vL16}")
    g(f"s_cmp_eq_u32 s{sG}, 3"); g(f"s_cselect_b32 exec_lo, 0xff, -1"); g(f"s_cselect_b32 exec_hi, 0, -1")
    g(f"buffer_load_dword v255, v{vt}, {S(sWb,4)}, s{sT1} offen")
    g("s_mov_b64 exec, -1")
    g(f"s_mul_i32 s{sT1}, s{sJ}, 5"); g(f"s_lshr_b32 s{sT1}, s{sT1}, 2"); g(f"s_mul_i32 s{sT1}, s{sT1}, {96 << FSH}")
    g(f"s_mul_i32 s{sT2}, s{sG}, {24 << FSH}"); g(f"s_add_u32 s{sT1}, s{sT1}, s{sT2}"); g(f"s_add_u32 s{sT1}, s{sT1}, {WS_GFL}")
    poll_flags(k, vGfl, f"s{sT1}", vt+1, 1, sSp, sleep=gsleep)
    st("gflags")
    stream_gemm(k, "m2", 24, DEPTH, S_TOK*2, sWa, sTso, vTsrc2, sRing, vTr2, TB, "perm", sDso, vD2, DR, 3, acc, False, sCnt)
    st("m2k")
    g(f"s_setprio {e2prio}")
    sSt = [sFa, sDb, sFl, sCnt, sTso]
    sFlg = sP
    g(f"s_lshl_b32 s{sFlg}, s{sI}, {5+FSH}"); g(f"s_lshl_b32 s{sT2}, s{sG}, {3+FSH}"); g(f"s_add_u32 s{sFlg}, s{sFlg}, s{sT2}")
    g(f"s_add_u32 s{sFlg}, s{sFlg}, {WS_OFL}")
    g(f"v_and_b32 v{vt}, 7, v0"); g(f"v_lshlrev_b32 v{vt}, {FSH}, v{vt}")
    if k.wofast: g(f"buffer_load_dword v{vt+6}, v{vt}, {S(sWS,4)}, s{sFlg} offen sc1")
    g(f"s_mul_i32 s{sT0}, s{sJ}, 52"); g(f"s_lshr_b32 s{sT0}, s{sT0}, 8"); g(f"s_mul_i32 s{sT0}, s{sT0}, 5")
    g(f"s_sub_u32 s{sT0}, s{sJ}, s{sT0}")
    for s_ in range(5):
        g(f"s_mov_b32 s{sSt[s_]}, s{sT0}")
        g(f"s_add_u32 s{sT0}, s{sT0}, 1"); g(f"s_cmp_eq_u32 s{sT0}, 5"); g(f"s_cselect_b32 s{sT0}, 0, s{sT0}")
    def issue_wo(stage, slot):
        for u in range(5):
            g(f"s_add_u32 m0, s{sRing}, {slot*5120 + u*1024}")
            if u == 0:
                g(f"s_mul_i32 s{sT1}, s{sSt[stage]}, {32*1280}"); g(f"s_add_u32 s{sT1}, s{sT1}, s{sWo}")
            else: g("s_nop 0")
            g(f"buffer_load_dwordx4 v{vWsrc[u]}, {S(sWb,4)}, s{sT1} offen lds")
    for s_ in range(3): issue_wo(s_, s_)
    def residual():
        g(f"v_lshlrev_b32 v{vB2}, 16, v{vB2}")
        for kk in range(5):
            g(f"v_lshlrev_b32 v{RES+4*kk}, 16, v{vXr+2*kk}")
            g(f"v_and_b32 v{RES+4*kk+1}, 0xffff0000, v{vXr+2*kk}")
            g(f"v_lshlrev_b32 v{RES+4*kk+2}, 16, v{vXr+2*kk+1}")
            g(f"v_and_b32 v{RES+4*kk+3}, 0xffff0000, v{vXr+2*kk+1}")
        g(f"v_mov_b32 v{vt+4}, v{vB2}")
        for r in range(0, 20, 2): g(pk("add", RES+r, V(RES+r,2), V(vt+4,2), None, "[1,0]"))
    if not k.wofast: residual()
    g(f"s_mul_i32 s{sDso}, s{sI}, 81920"); g(f"s_mul_i32 s{sT0}, s{sG}, 10240")
    g(f"s_add_u32 s{sDso}, s{sDso}, s{sT0}"); g(f"s_add_u32 s{sDso}, s{sDso}, {WS_OF}")
    if k.wofast:
        g("s_waitcnt vmcnt(15)")
        g(f"v_cmp_ne_u32 vcc, s{sNon}, v{vt+6}")
        g.nop(5)
        g("s_cbranch_vccz L_o_ready")
    poll_flags(k, vt, f"s{sFlg}", vt+1, 1, sSp, sleep=osleep)
    g.label("L_o_ready")
    st("oflags")
    for s_ in range(5):
        g(f"s_lshl_b32 s{sT0}, s{sSt[s_]}, 11"); g(f"s_add_u32 s{sT0}, s{sT0}, s{sDso}")
        for m in range(2):
            for ss in range(2):
                kk = 2*s_ + m
                g(f"buffer_load_dwordx4 {V(DR+(2*kk+ss)*4,4)}, v{vL16 if ss==0 else vO1}, {S(sWS,4)}, s{sT0} offen offset:{m*1024} sc1")
    if k.wofast: residual()
    def wo_rd(kk, buf):
        stage = kk // 2; slot = stage % 3; m = kk % 2
        for a in range(3):
            for t in range(2):
                g(f"ds_read_b64_tr_b16 {V(TB[buf]+4*a+2*t,2)}, v{vWtr} offset:{slot*5120 + m*2560 + t*640 + a*64}")
    def wo_mf(kk, buf):
        for a in range(3):
            for ss in range(2):
                c = acc(ss, a)
                g(f"v_mfma_f32_32x32x16_bf16 {V(c,16)}, {V(TB[buf]+4*a,4)}, {V(DR+(2*kk+ss)*4,4)}, {V(c,16)}")
    vw = [16, 17, 18, 5, 0]
    g(f"s_waitcnt vmcnt({vw[0]})")
    wo_rd(0, 0)
    for kk in range(10):
        stage = kk // 2
        if kk < 9:
            if (kk+1) % 2 == 0:
                g("s_waitcnt lgkmcnt(0)")
                wo_mf(kk, kk % 2)
                if stage < 2: issue_wo(stage+3, stage % 3)
                g(f"s_waitcnt vmcnt({vw[stage+1]})")
                wo_rd(kk+1, (kk+1) % 2)
            else:
                wo_rd(kk+1, (kk+1) % 2)
                g("s_waitcnt lgkmcnt(6)")
                wo_mf(kk, kk % 2)
        else:
            g("s_waitcnt lgkmcnt(0)")
            wo_mf(kk, kk % 2)
    st("wok")
    def quad(Q):
        ss = Q // 10; qq = Q % 10
        return acc(ss, qq // 4) + 4*(qq % 4)
    g.nop(12)
    for o in range(4):
        g(f"s_cmp_eq_u32 s{sG}, {o}"); g(f"s_cbranch_scc1 L_fin_w{o}")
        g(f"s_sub_u32 s{sT1}, {o+3}, s{sG}"); g(f"s_and_b32 s{sT1}, s{sT1}, 3"); g(f"s_mul_i32 s{sT1}, s{sT1}, 5120")
        g(f"v_add_u32 v{vt+1}, s{sT1}, v{vWr}")
        for kk in range(5): g(f"ds_write_b128 v{vt+1}, {V(quad(5*o+kk),4)} offset:{kk*1024}")
        g.label(f"L_fin_w{o}")
    g("s_waitcnt lgkmcnt(0)")
    lds_signal(g, vCnt, vOne, CNT_FA)
    for o in range(4):
        g(f"s_cmp_lg_u32 s{sG}, {o}"); g(f"s_cbranch_scc1 L_fin_mv{o}")
        for kk in range(5):
            for r in (0, 2): g(pk("add", RES+4*kk+r, V(RES+4*kk+r,2), V(quad(5*o+kk)+r,2)))
        g.label(f"L_fin_mv{o}")
    lds_spin(k, vCnt, CNT_FA, vt+2, sT2, sSp, 4)
    P = DR
    for k3 in range(1, 4):
        g(f"s_add_u32 s{sT1}, s{sG}, {k3}"); g(f"s_and_b32 s{sT1}, s{sT1}, 3")
        g(f"s_mul_i32 s{sT2}, s{sT1}, {RING}"); g(f"s_add_u32 s{sT2}, s{sT2}, {L_RING + ((-k3-1+4) & 3)*5120}")
        g(f"v_add_u32 v{vt+1}, s{sT2}, v{vL16}")
        for kk in range(5): g(f"ds_read_b128 {V(P+20*(k3-1)+4*kk,4)}, v{vt+1} offset:{kk*1024}")
    for k3 in range(3):
        g(f"s_waitcnt lgkmcnt({10-5*k3})")
        for r in range(0, 20, 2): g(pk("add", RES+r, V(RES+r,2), V(P+20*k3+r,2)))
    for kk in range(5):
        g(f"v_cvt_pk_bf16_f32 v{P+2*kk}, v{RES+4*kk}, v{RES+4*kk+1}")
        g(f"v_cvt_pk_bf16_f32 v{P+2*kk+1}, v{RES+4*kk+2}, v{RES+4*kk+3}")
        g(f"buffer_store_dwordx2 {V(P+2*kk,2)}, v{vXo}, {S(sOut,4)}, s{sXo} offen offset:{16*kk}{k.outmod}")
    g.label("L_gdone")
    if k.stamps:
        for r in ("G1", "G2"): k.names[r] = k.names[r][:8] + k.names["G"][8:]
    k.dump("G", sT0, vt, vt+1)
    if k.stamps:
        for r in ("G1", "G2"): k.names[r] = k.names[r][:8] + k.names["G"][8:]
    print("gemm vgprs", nv1, vb.p)
    return max(nv1, vb.p)

NAME = "parallel_sum__grouped_kv_mqa__mixer_token_mlp__prompt_kernel"
def gen_fused(stamps=False, name=NAME, prio=0, gate=1, xrot=0, niter=8, hprobe=0, gprobe=0, w1probe=1, wqdelay=2, xprobe=0, wqprobe=0, eprio=0, e2prio=0, pos=4, xdiag=0, osleep=1, gsleep=1, remap=1, kvrot=0, krot=0, qpat=1, gpoll=1, spinsleep=0, gskip=0, d1=8, ksleep=2, hsleep=2, outm=0, kvprio=0, prog=1, nobar=0, pack4=1, hprio=0, hwait=4, kvfirst=1, hbar=0, kvself=0, early=0, exp_nodma=0, gate2=0, stage=0, hx0=0, kvpd=1, dprio=0, aprio=0, kvprobe=0, xrot2=0, kvdiag=0, near=1, lay=1, dfirst=1, small=0, wofast=0, estart=0):
    k = K(stamps); g = k.g; k.xdiag = xdiag; k.gpoll = gpoll; k.gsleep2 = spinsleep; k.spinsleep = 0; k.gskip = gskip; k.kvprio = kvprio; k.nobar = nobar; k.pack4 = pack4; k.kvfirst = kvfirst; k.early = early; k.estart = estart; k.wofast = wofast; k.small = small; k.dfirst = dfirst; k.lay = lay; k.near = near; k.kvdiag = kvdiag; k.xrot2 = xrot2; k.kvprobe = kvprobe; k.dprio = dprio; k.aprio = aprio; k.hx0 = hx0; k.kvpd = kvpd; k.stage = stage; k.gate2 = gate2; k.exp_nodma = exp_nodma; k.kvself = kvself; k.hprio = hprio; k.hwait = hwait; k.hbar = hbar; k.outmod = ['', ' sc1', ' nt', ' sc0 sc1', ' sc1 nt'][outm]
    g.raw(kernel_header(name))
    g("s_cmp_ge_u32 s2, 256"); g("s_cbranch_scc1 L_end")
    k.stamp("A", "rstart", real=True); k.stamp("A", "start")
    g(f"s_load_dwordx2 {S(sPtr,2)}, s[0:1], {KA_WS}")
    g(f"s_load_dwordx8 {S(sKA,8)}, s[0:1], {KA_X}")
    g(f"s_load_dwordx2 {S(sKA+8,2)}, s[0:1], {KA_W1}")
    g("v_lshrrev_b32 v1, 6, v0"); g("v_and_b32 v0, 63, v0")
    g(f"v_readfirstlane_b32 s{sW}, v1")
    g("v_mov_b32 v1, 0"); g("v_lshlrev_b32 v2, 2, v0"); g(f"v_add_u32 v2, {L_CNT}, v2")
    g(f"s_cmp_lg_u32 s{sW}, 7"); g("s_cbranch_scc1 L_nz")
    g("s_mov_b64 exec, 0xffff"); g("ds_write_b32 v2, v1"); g("s_mov_b64 exec, -1")
    g.label("L_nz")
    g(f"s_and_b32 s{sXc}, s2, 7"); g(f"s_lshr_b32 s{sN}, s2, 3")
    if remap:
        g(f"s_lshl_b32 s{sI}, s{sXc}, 2"); g(f"s_lshr_b32 s{sJ}, s{sN}, 3"); g(f"s_add_u32 s{sI}, s{sI}, s{sJ}")
        g(f"s_and_b32 s{sJ}, s{sN}, 7")
    else:
        g(f"s_lshl_b32 s{sI}, s{sXc}, 2"); g(f"s_and_b32 s{sJ}, s{sN}, 3"); g(f"s_add_u32 s{sI}, s{sI}, s{sJ}")
        g(f"s_lshr_b32 s{sJ}, s{sN}, 2")
    phase_p(k, xrot, w1probe, wqdelay, xprobe, wqprobe, qpat, ksleep, prog)
    nva = attention(k, niter, pos, kvrot)
    if k.lay: g.L += k.deferred
    g.raw(".p2align 6")
    nvg = gemm_waves(k, prio, gate, eprio, e2prio, osleep, gsleep, d1, hsleep)
    g.label("L_end")
    g("s_endpgm")
    return k, g.text(), kernel_desc(name, 256), LDS_TOTAL

HEADER = open("header.txt").read() if __import__("os").path.exists("header.txt") else ""
def build_file(path, stamps=False, **kw):
    from build import HEADER
    k, text, desc, lds = gen_fused(stamps, **kw)
    out = HEADER + f"; @launch grid=(256,1,1) block=(512,1,1) lds={lds}\n" + '.amdgcn_target "amdgcn-amd-amdhsa--gfx950"\n' + text + desc
    open(path, "w").write(out)
    return k
if __name__ == "__main__":
    import sys, hazard
    k = build_file("f.s", stamps=False)
    hazard.check(open("f.s").read())
    k = build_file("fs.s", stamps=True)
    print(k.names)
```

```python
import math, struct
from asm import *
from lay2 import *

def f32(x): return "0x%08x" % struct.unpack("<I", struct.pack("<f", x))[0]
TBOUND2 = 8100.0

sWS, sI, sJ, sW, sNon, sN, sXc = 4, 8, 9, 10, 11, 12, 13
sPtr = 14
sKA = 20
SFREE = 18
STB = 64

class K:
    def __init__(self, stamps):
        self.g = Gen(); self.stamps = stamps; self.uid = 0
        self.names = {}
        self.xdiag = False
    def tag(self, p):
        self.uid += 1; return f"{p}{self.uid}"
    def stamp(self, role, name, real=False):
        if not self.stamps: return
        lst = self.names.setdefault(role, [])
        k = len(lst); assert k < 19, role
        r = STB + 2*k
        self.g(f"s_memtime s[{r}:{r+1}]" if not real else f"s_memrealtime s[{r}:{r+1}]")
        lst.append(name)
    def fork(self, role, parent, pad=None):
        if self.stamps:
            self.names[role] = list(self.names.get(parent, []))
            if pad:
                while len(self.names[role]) < pad: self.names[role].append("_")
    def dump(self, role, sT, v1, v2):
        if not self.stamps: return
        g = self.g
        self.stamp(role, "end"); self.stamp(role, "rend", real=True)
        g(f"s_lshl_b32 s{sT}, s2, 3"); g(f"s_add_u32 s{sT}, s{sT}, s{sW}"); g(f"s_lshl_b32 s{sT}, s{sT}, 7")
        g(f"s_add_u32 s{sT}, s{sT}, {WS_DBG}")
        g("s_waitcnt lgkmcnt(0)"); g("s_mov_b64 exec, 1"); g(f"v_mov_b32 v{v2}, 0")
        for i in range(len(self.names[role])):
            g(f"v_mov_b32 v{v1}, s{STB+2*i}")
            g(f"buffer_store_dword v{v1}, v{v2}, s[{sWS}:{sWS+3}], s{sT} offen offset:{4*i}")
        g("s_mov_b64 exec, -1")

def lds_signal(g, vcnt, vone, off):
    g("s_mov_b64 exec, 1"); g(f"ds_add_u32 v{vcnt}, v{vone} offset:{off}"); g("s_mov_b64 exec, -1")

def lds_spin(k, vcnt, off, vtmp, stmp, scnt, target, have=None):
    g = k.g; t = k.tag("sp")
    if have is not None:
        g(f"v_readfirstlane_b32 s{stmp}, v{have}")
        g(f"s_cmp_ge_u32 s{stmp}, {target}")
        g(f"s_cbranch_scc1 L_{t}_ok")
    if have is None and getattr(k, "spinsleep", 0):
        g(f"ds_read_b32 v{vtmp}, v{vcnt} offset:{off}")
        g("s_waitcnt lgkmcnt(0)")
        g(f"v_readfirstlane_b32 s{stmp}, v{vtmp}")
        g(f"s_cmp_ge_u32 s{stmp}, {target}")
        g(f"s_cbranch_scc1 L_{t}_ok")
    g(f"s_mov_b32 s{scnt}, 0")
    g.label(f"L_{t}")
    if getattr(k, "spinsleep", 0): g(f"s_sleep {k.spinsleep}")
    g(f"ds_read_b32 v{vtmp}, v{vcnt} offset:{off}")
    g(f"s_add_u32 s{scnt}, s{scnt}, 1")
    g("s_waitcnt lgkmcnt(0)")
    g(f"v_readfirstlane_b32 s{stmp}, v{vtmp}")
    g(f"s_cmp_ge_u32 s{scnt}, {SPIN_MAX}")
    g(f"s_cbranch_scc1 L_{t}_ok")
    g(f"s_cmp_ge_u32 s{stmp}, {target}")
    g(f"s_cbranch_scc0 L_{t}")
    g.label(f"L_{t}_ok")

def poll_flags(k, voff, soff, vF, n, scnt, sleep=1):
    g = k.g; t = k.tag("pf")
    g(f"s_mov_b32 s{scnt}, 0")
    g.label(f"L_{t}")
    op = "buffer_load_dword" if n == 1 else "buffer_load_dwordx4"
    g(f"{op} {V(vF,n)}, v{voff}, {S(sWS,4)}, {soff} offen sc1")
    g(f"s_add_u32 s{scnt}, s{scnt}, 1")
    g("s_waitcnt vmcnt(0)")
    g(f"v_cmp_ne_u32 vcc, s{sNon}, v{vF}")
    for r in range(1, n):
        g(f"v_xor_b32 v{vF+r}, s{sNon}, v{vF+r}")
    if n == 4:
        g(f"v_or3_b32 v{vF+1}, v{vF+1}, v{vF+2}, v{vF+3}")
        g(f"v_cmp_ne_u32 s[{SFREE}:{SFREE+1}], 0, v{vF+1}")
        g("s_nop 1")
        g(f"s_or_b64 vcc, vcc, s[{SFREE}:{SFREE+1}]")
    g(f"s_cmp_ge_u32 s{scnt}, {SPIN_MAX >> 4}")
    g(f"s_cbranch_scc1 L_{t}_ok")
    g("s_nop 1")
    g(f"s_cbranch_vccz L_{t}_ok")
    if sleep: g(f"s_sleep {sleep}")
    g(f"s_branch L_{t}")
    g.label(f"L_{t}_ok")

def poll_flags4(k, voff, soff, vF, scnt, stmp, sleep=2):
    g = k.g; t = k.tag("pf")
    g(f"s_mov_b32 s{scnt}, 0")
    g.label(f"L_{t}")
    g(f"s_mov_b32 s{stmp}, s{soff}")
    for q in range(4):
        g(f"buffer_load_dword v{vF+q}, v{voff}, {S(sWS,4)}, s{stmp} offen sc1")
        if q < 3: g(f"s_add_u32 s{stmp}, s{stmp}, {64 << FSH}")
    g(f"s_add_u32 s{scnt}, s{scnt}, 1")
    g("s_waitcnt vmcnt(0)")
    for r in range(4): g(f"v_xor_b32 v{vF+r}, s{sNon}, v{vF+r}")
    g(f"v_or3_b32 v{vF+1}, v{vF+1}, v{vF+2}, v{vF+3}")
    g(f"v_or_b32 v{vF}, v{vF}, v{vF+1}")
    g(f"v_cmp_ne_u32 vcc, 0, v{vF}")
    g(f"s_cmp_ge_u32 s{scnt}, {SPIN_MAX >> 4}")
    g(f"s_cbranch_scc1 L_{t}_ok")
    g("s_nop 1")
    g(f"s_cbranch_vccz L_{t}_ok")
    if sleep: g(f"s_sleep {sleep}")
    g(f"s_branch L_{t}")
    g.label(f"L_{t}_ok")

def flag4_addr(g, sD, sT, base, pack4):
    g(f"s_lshl_b32 s{sD}, s{sI}, 3"); g(f"s_add_u32 s{sD}, s{sD}, s{sJ}")
    if pack4:
        g(f"s_and_b32 s{sT}, s{sD}, 3"); g(f"s_lshl_b32 s{sT}, s{sT}, 2")
        g(f"s_lshr_b32 s{sD}, s{sD}, 2"); g(f"s_lshl_b32 s{sD}, s{sD}, {FSH}"); g(f"s_add_u32 s{sD}, s{sD}, s{sT}")
    else:
        g(f"s_lshl_b32 s{sD}, s{sD}, {FSH}")
    g(f"s_add_u32 s{sD}, s{sD}, {base}")

def write_flag(g, soff, vtmp, vzero):
    g(f"v_mov_b32 v{vtmp}, s{sNon}")
    g(f"v_mov_b32 v{vzero}, 0")
    g("s_mov_b64 exec, 1")
    g(f"buffer_store_dword v{vtmp}, v{vzero}, {S(sWS,4)}, s{soff} offen sc1")
    g("s_mov_b64 exec, -1")

def nonce_hash(g):
    g(f"s_mov_b32 s{SFREE}, s{sNon}")
    g(f"s_xor_b32 s{sNon}, s{sNon}, 0x5bd1e995")
    g(f"s_mul_i32 s{sNon}, s{sNon}, 0x9e3779b1")
    g(f"s_add_u32 s{sNon}, s{sNon}, 0x7f4a7c15")
    g(f"s_cmp_eq_u32 s{sNon}, s{SFREE}")
    g(f"s_addc_u32 s{sNon}, s{sNon}, 0")

def srd(g, dst, lo, hi, nbytes):
    g(f"s_mov_b32 s{dst}, s{lo}"); g(f"s_and_b32 s{dst+1}, s{hi}, 0xffff")
    g(f"s_mov_b32 s{dst+2}, 0x{nbytes:x}"); g(f"s_mov_b32 s{dst+3}, 0x20000")

def xreduce(g, reg, vt, op, which=(16, 32)):
    for wd in which:
        g(f"v_mov_b32 v{vt}, v{reg}"); g.nop(2)
        g(f"v_permlane{wd}_swap_b32 v{reg}, v{vt}"); g.nop(1)
        g(f"{op} v{reg}, v{reg}, v{vt}")

def phase_p(k, xrot=False, w1probe=1, wqdelay=1, xprobe=1, wqprobe=1, qpat=0, ksleep=2, prog=1):
    g = k.g
    va = Alloc(1, 255, "v"); sa = Alloc(sKA+12, STB, "s")
    sX = sa(4); sTg = sa(); sKs = sa(); sXoff = sa(); sT0 = sa(); sT1 = sa(); sT2 = sa(); sTile = sa(); sSc = sa(); sRot = sa(); sKi = sa(); sWrapK = sa(); sIncK = sa(); sOnes = sa(); sMask = sa()
    vT = va(); vG = va(); vXo = va(); vTmp = va(); vTmp2 = va(); vTmp3 = va(); vL16 = va(); vCn = va(); vOn = va()
    X = va(80, 4)
    vS = va(2, 2); vQ = va(2, 2); vRS = va(2, 2); vNB = va(2, 2); vR2 = va(); vP = va(8, 2)
    base = va.p
    if k.early:
        g(f"s_cmp_ge_u32 s{sW}, 6"); g("s_cbranch_scc1 L_dma")
        g(f"s_cmp_eq_u32 s{sW}, 4"); g("s_cbranch_scc1 L_dma")
    sXq = [sa() for _ in range(4)]
    g(f"v_and_b32 v{vT}, 15, v0")
    g(f"v_lshrrev_b32 v{vG}, 4, v0")
    g(f"s_lshr_b32 s{sTg}, s{sJ}, 1")
    g(f"s_cmp_lt_u32 s{sW}, 4")
    g(f"s_cselect_b32 s{sT0}, s{sW}, s{sTg}")
    g(f"s_lshl_b32 s{sKs}, s{sI}, 2")
    g(f"s_add_u32 s{sKs}, s{sKs}, s{sT0}")
    g(f"s_mul_i32 s{sXoff}, s{sKs}, {16*1280}")
    g(f"v_mul_u32_u24 v{vXo}, 1280, v{vT}")
    g(f"v_lshl_add_u32 v{vXo}, v{vG}, 4, v{vXo}")
    g(f"v_mov_b32 v{vCn}, {L_CNT}"); g(f"v_mov_b32 v{vOn}, 1")
    if k.xrot2: g(f"s_add_u32 s{sRot}, s{sI}, s{sXc}"); g(f"s_and_b32 s{sRot}, s{sRot}, 3")
    else: g(f"s_and_b32 s{sRot}, s{sI}, 3")
    g(f"s_mul_i32 s{sRot}, s{sRot}, {5 if prog else 0}")
    g(f"s_cmp_eq_u32 s{sW}, 5"); g(f"s_cselect_b32 s{sRot}, 0, s{sRot}")
    g(f"s_lshl_b32 s{sXq[0]}, s{sRot}, 6"); g(f"s_add_u32 s{sXq[0]}, s{sXq[0]}, s{sXoff}")
    for q in range(1, 4):
        g(f"s_add_u32 s{sXq[q]}, s{sRot}, {5*q}"); g(f"s_cmp_ge_u32 s{sXq[q]}, 20")
        g(f"s_cselect_b32 s{sXq[q]}, 1280, 0"); g(f"s_sub_u32 s{sXq[q]}, s{sXq[0]}, s{sXq[q]}")
    g("s_waitcnt lgkmcnt(0)")
    if not k.early: g("s_barrier")
    k.stamp("A", "bar0")
    if k.near:
        sKn = sa(4); sUn = sa()
        g(f"s_cmp_lt_u32 s{sW}, 4"); g("s_cbranch_scc1 L_near_done")
        g(f"s_cmp_eq_u32 s{sW}, 5"); g("s_cbranch_scc1 L_near_done")
        g(f"s_and_b32 s{sT0}, s{sJ}, 1"); g(f"s_cmp_eq_u32 s{sT0}, 1")
        g(f"s_cselect_b32 s{sKn}, s{sKA+6}, s{sKA+4}")
        g(f"s_cselect_b32 s{sKn+1}, s{sKA+7}, s{sKA+5}")
        g(f"s_and_b32 s{sKn+1}, s{sKn+1}, 0xffff")
        g(f"s_mov_b32 s{sKn+2}, {D*DH*2}"); g(f"s_mov_b32 s{sKn+3}, 0x20000")
        g(f"s_sub_u32 s{sUn}, s{sW}, 5"); g(f"s_max_i32 s{sUn}, s{sUn}, 0"); g(f"s_lshl_b32 s{sUn}, s{sUn}, 10")
        g(f"v_lshlrev_b32 v{vL16}, 4, v0")
        g(f"s_mov_b32 s{sT0}, s{sUn}")
        for nn in range(9):
            if nn == 8: g(f"s_cmp_lg_u32 s{sUn}, 0"); g("s_cbranch_scc1 L_near_done")
            g(f"s_add_u32 m0, s{sUn}, {L_WKV + nn*3072}")
            if nn: g(f"s_add_u32 s{sT0}, s{sT0}, 3072")
            else: g("s_nop 0")
            g(f"buffer_load_dwordx4 v{vL16}, {S(sKn,4)}, s{sT0} offen lds")
        g.label("L_near_done")
    srd(g, sX, sKA, sKA+1, S_TOK*D*2)
    g(f"s_cmp_ge_u32 s{sW}, 4"); g("s_cbranch_scc1 L_other")
    def xloads():
        for m in range(20):
            g(f"buffer_load_dwordx4 {V(X+4*m,4)}, v{vXo}, {S(sX,4)}, s{sXq[m//5]} offen offset:{64*m}")
    if k.kvfirst:
        g(f"s_cmp_lg_u32 s{sW}, s{sTg}"); g("s_cbranch_scc1 L_pre")
        if k.kvself:
            sKV0 = sa(4)
            g(f"s_and_b32 s{sT0}, s{sJ}, 1"); g(f"s_cmp_eq_u32 s{sT0}, 1")
            g(f"s_cselect_b32 s{sKV0}, s{sKA+6}, s{sKA+4}")
            g(f"s_cselect_b32 s{sKV0+1}, s{sKA+7}, s{sKA+5}")
            g(f"s_and_b32 s{sKV0+1}, s{sKV0+1}, 0xffff")
            g(f"s_mov_b32 s{sKV0+2}, {D*DH*2}"); g(f"s_mov_b32 s{sKV0+3}, 0x20000")
            g(f"v_lshlrev_b32 v{vL16}, 4, v0")
            xloads()
            g(f"s_mov_b32 s{sT0}, 0")
            for n in range(25):
                g(f"s_mov_b32 m0, {L_WKV + n*1024}")
                if n: g(f"s_add_u32 s{sT0}, s{sT0}, 1024")
                else: g("s_nop 0")
                g(f"buffer_load_dwordx4 v{vL16}, {S(sKV0,4)}, s{sT0} offen lds")
            lds_signal(g, vCn, vOn, CNT_KVI)
        else:
            xloads()
        g.label("L_pre")
    else:
        g.label("L_xload")
        xloads()
    srd(g, sWS, sPtr, sPtr+1, WS_SIZE)
    if not k.kvfirst: g(f"s_cmp_eq_u32 s{sW}, 5"); g("s_cbranch_scc1 L_nonce_done")
    g(f"s_load_dword s{sNon}, {S(sPtr,2)}, {WS_NONCE}")
    g.label("L_nonce_done")
    g(f"v_lshlrev_b32 v{vL16}, 4, v0")
    if not k.kvfirst: k.stamp("A", "xissued")
    ra = Alloc(base, 255, "v")
    vTrQ0 = ra(); vTrQ1 = ra(); vQd = [ra() for _ in range(5)]
    AB = [ra(20, 4), ra(20, 4)]; accQ = ra(20, 4)
    vTrKV = ra(); vTT = ra(); accKV = ra(8, 4); vZ = ra(4, 4)
    KB = [AB[0] + 8*q for q in range(k.kvpd + 1)]
    r1 = Alloc(base, 255, "v")
    vHw = r1(); vHr = r1(); HB = [r1(4, 4) for _ in range(4)]; vRS2 = r1(2, 2); vNB2 = r1(2, 2)
    g(f"v_bfe_u32 v{vTmp}, v0, 2, 2")
    g(f"v_and_b32 v{vTmp2}, 3, v0")
    if not k.kvfirst: g(f"s_cmp_eq_u32 s{sW}, 5"); g("s_cbranch_scc1 L_stats")
    g(f"v_lshl_add_u32 v{vTmp3}, v{vG}, 2, v{vTmp}")
    g(f"v_mul_u32_u24 v{vTrQ0}, 160, v{vTmp3}")
    g(f"v_lshl_add_u32 v{vTrQ0}, v{vTmp2}, 3, v{vTrQ0}")
    g(f"v_add_u32 v{vTrQ1}, 51200, v{vTrQ0}")
    g(f"v_lshl_add_u32 v{vTmp3}, v{vG}, 3, v{vTmp}")
    g(f"v_mul_u32_u24 v{vTrKV}, 40, v{vTmp3}")
    g(f"v_lshl_add_u32 v{vTrKV}, v{vTmp2}, 3, v{vTrKV}")
    g(f"v_add_u32 v{vTrKV}, {L_WKV}, v{vTrKV}")
    g(f"s_and_b32 s{sT1}, s{sW}, 1"); g(f"s_lshl_b32 s{sT1}, s{sT1}, 4")
    g(f"v_add_u32 v{vTT}, s{sT1}, v{vT}")
    g(f"s_lshr_b32 s{sTile}, s{sKs}, 1")
    g(f"s_mul_i32 s{sTile}, s{sTile}, {KV_TILE}")
    g(f"s_add_u32 s{sTile}, s{sTile}, {WS_KV}")
    g(f"s_lshr_b32 s{sT1}, s{sW}, 1"); g(f"s_mul_i32 s{sT1}, s{sT1}, 1280"); g(f"s_add_u32 s{sT1}, s{sT1}, {L_QX}")
    for ct in range(5):
        g(f"v_add_u32 v{vTmp}, {4*ct}, v{vG}")
        g(f"v_mul_u32_u24 v{vTmp2}, 52, v{vTmp}")
        g(f"v_lshrrev_b32 v{vTmp2}, 8, v{vTmp2}")
        g(f"v_mul_u32_u24 v{vTmp3}, 5, v{vTmp2}")
        g(f"v_sub_u32 v{vTmp}, v{vTmp}, v{vTmp3}")
        g(f"v_mul_u32_u24 v{vQd[ct]}, 2560, v{vTmp2}")
        g(f"v_lshrrev_b32 v{vTmp2}, 1, v{vTmp}")
        g(f"v_lshlrev_b32 v{vTmp2}, 9, v{vTmp2}")
        g(f"v_lshl_add_u32 v{vTmp2}, v{vTT}, 4, v{vTmp2}")
        g(f"v_and_b32 v{vTmp3}, 1, v{vTmp}")
        g(f"v_lshl_add_u32 v{vTmp2}, v{vTmp3}, 3, v{vTmp2}")
        g(f"v_lshlrev_b32 v{vTmp3}, 3, v{vTT}")
        g(f"v_add_u32 v{vTmp3}, 1024, v{vTmp3}")
        g(f"v_cmp_eq_u32 vcc, 4, v{vTmp}")
        g(f"v_add_u32 v{vQd[ct]}, s{sT1}, v{vQd[ct]}")
        g("s_nop 0")
        g(f"v_cndmask_b32 v{vTmp2}, v{vTmp2}, v{vTmp3}, vcc")
        g(f"v_add_u32 v{vQd[ct]}, v{vQd[ct]}, v{vTmp2}")
    if k.kvfirst:
        g(f"s_cmp_eq_u32 s{sW}, s{sTg}"); g("s_cbranch_scc1 L_stats0")
        if k.stage: lds_spin(k, vCn, CNT_X0, vTmp, sT0, sT1, 1)
        g.label("L_xload")
        xloads()
        g(f"v_lshlrev_b32 v{vL16}, 4, v0")
        if k.early:
            g(f"s_cmp_eq_u32 s{sW}, 5"); g("s_cbranch_scc1 L_stats1")
        g.label("L_stats0")
        if k.early:
            g("s_barrier")
            g.label("L_stats1")
        k.stamp("A", "xissued")
    g.label("L_stats")
    g(f"s_mov_b32 s{sOnes}, 0x3f803f80"); g(f"s_mov_b32 s{sMask}, 0xffff0000")
    for r in (vS, vS+1, vQ, vQ+1): g(f"v_mov_b32 v{r}, 0")
    if k.kvself:
        g(f"s_cmp_eq_u32 s{sW}, s{sTg}"); g("s_cbranch_scc1 L_xw_kv")
        g("s_waitcnt vmcnt(0)"); g("s_branch L_xw_done")
        g.label("L_xw_kv"); g("s_waitcnt vmcnt(25)")
        g.label("L_xw_done")
    for m in range(20):
        if not k.kvself: g(f"s_waitcnt vmcnt({19-m})")
        if k.xdiag and m in (0, 9): k.stamp("A", f"x{m}")
        for r in range(4):
            g(f"v_dot2c_f32_bf16 v{vS+(r&1)}, {('s%d' % sOnes) if k.small else '0x3f803f80'}, v{X+4*m+r}")
            g(f"v_dot2c_f32_bf16 v{vQ+(r&1)}, v{X+4*m+r}, v{X+4*m+r}")
    k.stamp("A", "xland")
    g(f"s_cmp_eq_u32 s{sW}, 5"); g("s_cbranch_scc1 L_nosig")
    lds_signal(g, vCn, vOn, CNT_XL)
    if k.stage or k.hx0:
        g(f"s_cmp_lg_u32 s{sW}, s{sTg}"); g("s_cbranch_scc1 L_nosig")
        lds_signal(g, vCn, vOn, CNT_X0)
    g.label("L_nosig")
    g.nop(1)
    g(f"v_add_f32 v{vS}, v{vS}, v{vS+1}")
    g(f"v_add_f32 v{vQ}, v{vQ}, v{vQ+1}")
    xreduce(g, vS, vTmp, "v_add_f32"); xreduce(g, vQ, vTmp, "v_add_f32")
    g(f"v_mul_f32 v{vS}, {f32(1/640)}, v{vS}")
    g(f"v_mul_f32 v{vQ}, {f32(1/640)}, v{vQ}")
    g(f"v_fma_f32 v{vQ}, -v{vS}, v{vS}, v{vQ}")
    g(f"v_max_f32 v{vQ}, 0, v{vQ}")
    g(f"v_add_f32 v{vTmp}, {f32(1e-5)}, v{vQ}")
    g(f"v_rsq_f32 v{vRS}, v{vTmp}"); g.nop(1)
    g(f"v_mul_f32 v{vNB}, v{vS}, v{vRS}")
    g(f"v_sub_f32 v{vNB}, 0, v{vNB}")
    g(f"s_cmp_eq_u32 s{sW}, 5"); g("s_cbranch_scc1 L_h")
    for kk in range(0, 80, 4):
        for r in range(4):
            g(f"v_lshlrev_b32 v{vP+2*r}, 16, v{X+kk+r}")
            g(f"v_and_b32 v{vP+2*r+1}, {('s%d' % sMask) if k.small else '0xffff0000'}, v{X+kk+r}")
        for r in range(4):
            g(f"v_pk_fma_f32 {V(vP+2*r,2)}, {V(vP+2*r,2)}, {V(vRS,2)}, {V(vNB,2)} op_sel_hi:[1,0,0]")
        for r in range(4):
            g(f"v_cvt_pk_bf16_f32 v{X+kk+r}, v{vP+2*r}, v{vP+2*r+1}")
    k.stamp("A", "normed")
    g("s_waitcnt lgkmcnt(0)")
    nonce_hash(g)
    k.fork("G1", "A")
    g(f"s_cmp_lg_u32 s{sW}, s{sTg}"); g("s_cbranch_scc1 L_q")
    g("s_setprio 3")
    if k.kvself: g("s_waitcnt vmcnt(0)")
    else: lds_spin(k, vCn, CNT_WKV, vTmp, sT0, sT1, 3)
    if k.kvdiag: g(f"s_memtime s[{STB+32}:{STB+33}]")
    for r in range(8): g(f"v_mov_b32 v{accKV+r}, 0")
    g(f"s_mul_i32 s{sT0}, s{sRot}, 1280"); g(f"v_add_u32 v{vTrKV}, s{sT0}, v{vTrKV}")
    g(f"s_mov_b32 s{sKi}, s{sRot}")
    def rdkv(m):
        b = KB[m % len(KB)]
        L = [f"ds_read_b64_tr_b16 {V(b+4*tile+2*t,2)}, v{vTrKV} offset:{t*160 + tile*32}" for tile in range(2) for t in range(2)]
        L += [f"s_add_u32 s{sKi}, s{sKi}, 1", f"s_cmp_eq_u32 s{sKi}, 20", f"s_cselect_b32 s{sT0}, s{sWrapK}, s{sIncK}",
              f"s_cselect_b32 s{sKi}, 0, s{sKi}", f"v_add_u32 v{vTrKV}, s{sT0}, v{vTrKV}"]
        return L
    g(f"s_mov_b32 s{sWrapK}, {(-19*1280) & 0xffffffff}"); g(f"s_mov_b32 s{sIncK}, 1280")
    g(f"s_and_b32 s{sT0}, s{sJ}, 1")
    g(f"s_cmp_eq_u32 s{sT0}, 1")
    g("s_cbranch_scc1 L_v")
    for which in ("K", "V"):
        if which == "V": g.label("L_v")
        PD = k.kvpd
        for mm in range(PD):
            for x in rdkv(mm): g(x)
        for m in range(20):
            b = KB[m % len(KB)]
            nx = rdkv(m+PD) if m + PD < 20 else []
            for x in nx: g(x)
            g(f"s_waitcnt lgkmcnt({4*min(PD, 19-m)})")
            for tile in range(2):
                if which == "K": g(f"v_mfma_f32_16x16x32_bf16 {V(accKV+4*tile,4)}, {V(b+4*tile,4)}, {V(X+4*m,4)}, {V(accKV+4*tile,4)}")
                else:            g(f"v_mfma_f32_16x16x32_bf16 {V(accKV+4*tile,4)}, {V(X+4*m,4)}, {V(b+4*tile,4)}, {V(accKV+4*tile,4)}")
        if k.kvdiag: g(f"s_memtime s[{STB+34}:{STB+35}]")
        g.nop(8)
        b = KB[0]
        for tile in range(2):
            g(f"v_cvt_pk_bf16_f32 v{b+2*tile}, v{accKV+4*tile}, v{accKV+4*tile+1}")
            g(f"v_cvt_pk_bf16_f32 v{b+2*tile+1}, v{accKV+4*tile+2}, v{accKV+4*tile+3}")
        if which == "K":
            g(f"v_lshrrev_b32 v{vTmp}, 1, v{vG}")
            g(f"v_lshlrev_b32 v{vTmp}, 9, v{vTmp}")
            g(f"v_lshl_add_u32 v{vTmp}, v{vTT}, 4, v{vTmp}")
            g(f"v_and_b32 v{vTmp2}, 1, v{vG}")
            g(f"v_lshl_add_u32 v{vTmp}, v{vTmp2}, 3, v{vTmp}")
            g(f"buffer_store_dwordx2 {V(b,2)}, v{vTmp}, {S(sWS,4)}, s{sTile} offen sc1")
            g(f"v_lshlrev_b32 v{vTmp2}, 3, v{vTT}")
            g("s_mov_b64 exec, 0xffff")
            g(f"buffer_store_dwordx2 {V(b+2,2)}, v{vTmp2}, {S(sWS,4)}, s{sTile} offen offset:{KV_KHI} sc1")
            g("s_mov_b64 exec, -1")
            g(f"v_mul_f32 v{vS}, v{accKV}, v{accKV}")
            for r in range(1, 4): g(f"v_fmac_f32 v{vS}, v{accKV+r}, v{accKV+r}")
            g(f"v_mul_f32 v{vQ}, v{accKV+4}, v{accKV+4}")
            for r in range(1, 4): g(f"v_fmac_f32 v{vQ}, v{accKV+4+r}, v{accKV+4+r}")
            g(f"v_cmp_eq_u32 vcc, 0, v{vG}"); g.nop(2)
            g(f"v_cndmask_b32 v{vQ}, 0, v{vQ}, vcc")
            g(f"v_add_f32 v{vS}, v{vS}, v{vQ}")
            xreduce(g, vS, vTmp3, "v_add_f32")
            for rot in (8, 4, 2, 1):
                g.nop(2); g(f"v_max_f32_dpp v{vS}, v{vS}, v{vS} row_ror:{rot} row_mask:0xf bank_mask:0xf")
            g(f"s_lshl_b32 s{sT1}, s{sKs}, 2"); g(f"s_add_u32 s{sT1}, s{sT1}, {WS_KMAX}")
            g(f"v_mov_b32 v{vTmp3}, 0")
            g("s_mov_b64 exec, 1")
            g(f"buffer_store_dword v{vS}, v{vTmp3}, {S(sWS,4)}, s{sT1} offen sc1")
            g("s_mov_b64 exec, -1")
            g("s_branch L_kv_pub")
        else:
            g(f"s_and_b32 s{sT1}, s{sTg}, 1"); g(f"s_mul_i32 s{sT1}, s{sT1}, {V_JJ}")
            g(f"s_add_u32 s{sT1}, s{sT1}, s{sTile}"); g(f"s_add_u32 s{sT1}, s{sT1}, {KV_V}")
            g(f"v_and_b32 v{vTmp2}, 1, v{vG}")
            g(f"v_mul_u32_u24 v{vTmp2}, {V_KH}, v{vTmp2}")
            g(f"v_lshrrev_b32 v{vTmp3}, 1, v{vG}")
            g(f"v_lshl_add_u32 v{vTmp2}, v{vTmp3}, 3, v{vTmp2}")
            g(f"v_add_u32 v{vTmp}, 7, v{vT}")
            g(f"v_cmp_gt_u32 vcc, 4, v{vT}"); g.nop(2)
            g(f"v_cndmask_b32 v{vTmp}, v{vTmp}, v{vT}, vcc")
            g(f"v_subrev_u32 v{vTmp3}, 10, v{vT}")
            g(f"v_cmp_le_u32 vcc, 14, v{vT}"); g.nop(2)
            g(f"v_cndmask_b32 v{vTmp}, v{vTmp}, v{vTmp3}, vcc")
            g(f"v_lshl_add_u32 v{vTmp}, v{vTmp}, 4, v{vTmp2}")
            g(f"buffer_store_dwordx2 {V(b,2)}, v{vTmp}, {S(sWS,4)}, s{sT1} offen sc1")
            g(f"v_add_u32 v{vTmp3}, 6, v{vT}")
            g(f"v_lshl_add_u32 v{vTmp3}, v{vTmp3}, 4, v{vTmp2}")
            g("s_mov_b32 exec_lo, 0x000f000f"); g("s_mov_b32 exec_hi, 0x000f000f")
            g(f"buffer_store_dwordx2 {V(b+2,2)}, v{vTmp3}, {S(sWS,4)}, s{sT1} offen sc1")
            g("s_mov_b64 exec, -1")
            g(f"v_and_b32 v{vTmp}, 1, v0")
            g(f"v_mul_u32_u24 v{vTmp}, {V_KH}, v{vTmp}")
            g(f"v_bfe_u32 v{vTmp2}, v0, 1, 1")
            g(f"v_mul_u32_u24 v{vTmp3}, {(ZERO_SLOT-ONES_SLOT)*16}, v{vTmp2}")
            g(f"v_add_u32 v{vTmp}, v{vTmp}, v{vTmp3}")
            g(f"v_subrev_u32 v{vTmp2}, 1, v{vTmp2}")
            g(f"v_and_b32 v{vZ}, 0x3f803f80, v{vTmp2}")
            for r in range(1, 4): g(f"v_mov_b32 v{vZ+r}, v{vZ}")
            g("s_mov_b64 exec, 15")
            g(f"buffer_store_dwordx4 {V(vZ,4)}, v{vTmp}, {S(sWS,4)}, s{sT1} offen offset:{ONES_SLOT*16} sc1")
            g("s_mov_b64 exec, -1")
    g.label("L_kv_pub")
    flag4_addr(g, sT0, sT1, WS_KVF, k.pack4)
    if k.kvdiag: g(f"s_memtime s[{STB+36}:{STB+37}]")
    g("s_waitcnt vmcnt(0)")
    write_flag(g, sT0, vTmp, vTmp2)
    g("s_setprio 0")
    g.label("L_q")
    if not k.xdiag: k.stamp("A", "kvpub")
    lds_spin(k, vCn, CNT_WQA if prog else CNT_WQ, vTmp, sT0, sT1, 3)
    k.stamp("A", "wqrdy")
    for r in range(20): g(f"v_mov_b32 v{accQ+r}, 0")
    def rdq(m):
        b = AB[m & 1]; bs = vTrQ0 if m < 10 else vTrQ1; mo = (m % 10)*5120
        return [f"ds_read_b64_tr_b16 {V(b+4*ct+2*t,2)}, v{bs} offset:{mo + t*2560 + ct*32}" for ct in range(5) for t in range(2)]
    for x in rdq(0): g(x)
    for m in range(20):
        b = AB[m & 1]
        nx = rdq(m+1) if m < 19 else []
        if prog and m + 1 in (9, 15):
            g("s_waitcnt lgkmcnt(0)")
            lds_spin(k, vCn, CNT_WQB if m + 1 == 9 else CNT_WQ, vTmp, sT0, sT1, 3)
        if qpat == 0:
            for x in nx: g(x)
            g(f"s_waitcnt lgkmcnt({10 if nx else 0})")
            for ct in range(5):
                g(f"v_mfma_f32_16x16x32_bf16 {V(accQ+4*ct,4)}, {V(b+4*ct,4)}, {V(X+4*m,4)}, {V(accQ+4*ct,4)}")
        else:
            for x in nx[:4]: g(x)
            g(f"s_waitcnt lgkmcnt({4 if nx else 0})")
            for ct in range(5):
                g(f"v_mfma_f32_16x16x32_bf16 {V(accQ+4*ct,4)}, {V(b+4*ct,4)}, {V(X+4*m,4)}, {V(accQ+4*ct,4)}")
                if ct < 3:
                    for x in nx[4+2*ct:6+2*ct]: g(x)
    g(f"s_mov_b32 s{sSc}, {f32(QSCALE)}")
    g.nop(7)
    b = AB[0]
    for ct in range(5):
        for r in range(4): g(f"v_mul_f32 v{accQ+4*ct+r}, s{sSc}, v{accQ+4*ct+r}")
        g(f"v_cvt_pk_bf16_f32 v{b+2*ct}, v{accQ+4*ct}, v{accQ+4*ct+1}")
        g(f"v_cvt_pk_bf16_f32 v{b+2*ct+1}, v{accQ+4*ct+2}, v{accQ+4*ct+3}")
        g(f"ds_write_b64 v{vQd[ct]}, {V(b+2*ct,2)}")
    g("s_waitcnt lgkmcnt(0)")
    k.stamp("A", "qdone")
    if k.nobar:
        lds_signal(g, vCn, vOn, CNT_QX)
        lds_spin(k, vCn, CNT_QX, vTmp, sT0, sT1, 4)
    else:
        g("s_barrier")
    if k.lay:
        main_lines = g.L; g.L = []
    else:
        g("s_branch L_attn")
    g.label("L_other")
    srd(g, sWS, sPtr, sPtr+1, WS_SIZE)
    g(f"s_load_dword s{sNon}, {S(sPtr,2)}, {WS_NONCE}")
    if not k.early: g(f"s_cmp_lg_u32 s{sW}, 5"); g("s_cbranch_scc1 L_dma")
    g.label("L_hwait")
    if k.early: g("s_barrier")
    if k.hprio: g(f"s_setprio {k.hprio}")
    if k.stage == 2 or k.hx0: lds_spin(k, vCn, CNT_X0, vTmp, sT0, sT1, 1)
    elif k.hwait: lds_spin(k, vCn, CNT_XL, vTmp, sT0, sT1, k.hwait)
    g("s_branch L_xload")
    g.label("L_h")
    if k.stamps: k.names["G1"] = k.names["G1"][:(7 if k.xdiag else 5)] + ([] if k.xdiag else ["_"])
    g(f"v_mul_f32 v{vTmp}, v{vRS}, v{vRS}")
    g(f"v_mul_f32 v{vTmp}, v{vTmp}, v{vQ}")
    g(f"v_add_f32 v{vTmp}, {f32(1e-5)}, v{vTmp}")
    g(f"v_rsq_f32 v{vR2}, v{vTmp}")
    g(f"v_bfe_u32 v{vTmp}, v0, 2, 2"); g(f"v_and_b32 v{vTmp2}, 3, v0")
    g(f"v_mul_f32 v{vRS2}, v{vRS}, v{vR2}")
    g(f"v_mul_f32 v{vNB2}, v{vNB}, v{vR2}")
    g(f"v_mul_u32_u24 v{vHw}, {HT_PITCH}, v{vT}")
    g(f"v_lshl_add_u32 v{vHw}, v{vG}, 4, v{vHw}")
    g(f"v_add_u32 v{vHw}, {L_HT}, v{vHw}")
    g(f"v_lshrrev_b32 v{vTmp3}, 5, v0")
    g(f"v_lshl_add_u32 v{vTmp3}, v{vTmp3}, 3, v{vTmp}")
    g(f"v_mul_u32_u24 v{vHr}, {HT_PITCH}, v{vTmp3}")
    g(f"v_lshl_add_u32 v{vHr}, v{vTmp2}, 3, v{vHr}")
    g(f"v_bfe_u32 v{vTmp3}, v0, 4, 1")
    g(f"v_lshl_add_u32 v{vHr}, v{vTmp3}, 5, v{vHr}")
    g(f"v_add_u32 v{vHr}, {L_HT}, v{vHr}")
    g(f"s_and_b32 s{sT0}, s{sJ}, 1")
    g(f"s_cmp_eq_u32 s{sT0}, 1")
    g("s_cbranch_scc1 L_h1")
    for half in range(2):
        if half == 1: g.label("L_h1")
        for mm in range(10):
            reg = X + 4*(10*half + mm)
            for r in range(4):
                g(f"v_lshlrev_b32 v{vP+2*r}, 16, v{reg+r}")
                g(f"v_and_b32 v{vP+2*r+1}, {('s%d' % sMask) if k.small else '0xffff0000'}, v{reg+r}")
            for r in range(4):
                g(f"v_pk_fma_f32 {V(vP+2*r,2)}, {V(vP+2*r,2)}, {V(vRS2,2)}, {V(vNB2,2)} op_sel_hi:[1,0,0]")
            for r in range(4): g(f"v_cvt_pk_bf16_f32 v{reg+r}, v{vP+2*r}, v{vP+2*r+1}")
            g(f"ds_write_b128 v{vHw}, {V(reg,4)} offset:{64*mm}")
        if half == 0: g("s_branch L_h2")
    g.label("L_h2")
    g(f"s_mul_i32 s{sT0}, s{sT0}, {10*131072}")
    g(f"s_lshl_b32 s{sT1}, s{sKs}, 10")
    g(f"s_add_u32 s{sT0}, s{sT0}, s{sT1}")
    g(f"s_add_u32 s{sT0}, s{sT0}, {WS_HF}")
    g("s_waitcnt lgkmcnt(0)")
    nonce_hash(g)
    def hrd(dtl):
        b = HB[dtl % 4]
        g(f"ds_read_b64_tr_b16 {V(b,2)}, v{vHr} offset:{64*dtl}")
        g(f"ds_read_b64_tr_b16 {V(b+2,2)}, v{vHr} offset:{64*dtl + 4*HT_PITCH}")
    hrd(0); hrd(1)
    for dtl in range(10):
        if dtl + 2 < 10:
            if dtl >= 2: g("s_nop 1")
            hrd(dtl+2); g("s_waitcnt lgkmcnt(4)")
        elif dtl + 1 < 10: g("s_waitcnt lgkmcnt(2)")
        else: g("s_waitcnt lgkmcnt(0)")
        g(f"buffer_store_dwordx4 {V(HB[dtl % 4],4)}, v{vL16}, {S(sWS,4)}, s{sT0} offen sc1")
        g(f"s_add_u32 s{sT0}, s{sT0}, 131072")
    flag4_addr(g, sT0, sT1, WS_HFL, k.pack4)
    k.stamp("G1", "hst")
    if k.nobar: lds_signal(g, vCn, vOn, CNT_HT)
    elif k.hbar: g("s_barrier")
    g("s_waitcnt vmcnt(0)")
    write_flag(g, sT0, vTmp, vTmp2)
    k.stamp("G1", "hflag")
    if not k.nobar and not k.hbar: g("s_barrier")
    g("s_setprio 0")
    g("s_branch L_gemm")
    g.label("L_dma")
    if k.kvprio: g("s_setprio 2")
    da = Alloc(1, 255, "v"); ds = Alloc(sKA+12, STB, "s")
    sWQ = ds(4); sKV = ds(4); sW1 = ds(4); sU = ds(); sM = ds(); sA = ds(); sB = ds(); sC = ds(); sCt = ds()
    sP0 = None
    vWo = [da() for _ in range(5)]; vA = da(); vB = da(); vC = da(); vL = da(); vCn2 = da(); vOn2 = da()
    g(f"s_sub_u32 s{sU}, s{sW}, 5"); g(f"s_max_i32 s{sU}, s{sU}, 0")
    g(f"v_lshlrev_b32 v{vL}, 4, v0")
    g(f"v_mov_b32 v{vCn2}, {L_CNT}"); g(f"v_mov_b32 v{vOn2}, 1")
    if k.early:
        for u in range(5):
            g(f"v_add_u32 v{vA}, {64*u}, v0")
            g(f"v_mul_u32_u24 v{vB}, 52429, v{vA}")
            g(f"v_lshrrev_b32 v{vB}, 19, v{vB}")
            g(f"v_mul_u32_u24 v{vC}, 10, v{vB}")
            g(f"v_sub_u32 v{vA}, v{vA}, v{vC}")
            g(f"v_lshlrev_b32 v{vWo[u]}, 4, v{vA}")
            g(f"v_bfe_u32 v{vA}, v{vB}, 2, 2")
            g(f"v_lshlrev_b32 v{vA}, 3, v{vA}")
            g(f"v_lshrrev_b32 v{vC}, 4, v{vB}")
            g(f"v_lshl_add_u32 v{vA}, v{vC}, 2, v{vA}")
            g(f"v_and_b32 v{vC}, 3, v{vB}")
            g(f"v_add_u32 v{vA}, v{vA}, v{vC}")
            g(f"v_mul_u32_u24 v{vA}, 1280, v{vA}")
            g(f"v_add_u32 v{vWo[u]}, v{vWo[u]}, v{vA}")
        g(f"s_lshl_b32 s{sC}, s{sU}, 10")
        g("s_waitcnt lgkmcnt(0)")
        if k.stamps: k.names["G2"] = ["rstart", "start", "bar0"]
        if k.stamps: g(f"s_memtime s[{STB+4}:{STB+5}]")
        g(f"s_and_b32 s{sA}, s{sJ}, 1"); g(f"s_cmp_eq_u32 s{sA}, 1")
        g(f"s_cselect_b32 s{sKV}, s{sKA+6}, s{sKA+4}")
        g(f"s_cselect_b32 s{sKV+1}, s{sKA+7}, s{sKA+5}")
        g(f"s_and_b32 s{sKV+1}, s{sKV+1}, 0xffff")
        g(f"s_mov_b32 s{sKV+2}, {D*DH*2}"); g(f"s_mov_b32 s{sKV+3}, 0x20000")
        g(f"s_mov_b32 s{sA}, s{sC}")
        for nn in range(9):
            if nn == 8: g(f"s_cmp_lg_u32 s{sU}, 0"); g("s_cbranch_scc1 L_wkv_e")
            g(f"s_add_u32 m0, s{sC}, {L_WKV + nn*3072}")
            if nn: g(f"s_add_u32 s{sA}, s{sA}, 3072")
            else: g("s_nop 0")
            g(f"buffer_load_dwordx4 v{vL}, {S(sKV,4)}, s{sA} offen lds")
        g.label("L_wkv_e")
        g("s_barrier")
        srd(g, sWS, sPtr, sPtr+1, WS_SIZE)
        g(f"s_load_dword s{sNon}, {S(sPtr,2)}, {WS_NONCE}")
    else:
        if k.stamps: k.names["G2"] = ["rstart", "start", "bar0"]
        if not k.kvself and not k.near:
            g(f"s_and_b32 s{sM}, s{sI}, 3"); g(f"s_lshl_b32 s{sM}, s{sM}, 2"); g(f"s_lshr_b32 s{sA}, s{sJ}, 1")
            g(f"s_add_u32 s{sM}, s{sM}, s{sA}"); g(f"s_lshr_b32 s{sM}, s{sM}, 1")
            if k.xrot2:
                g(f"s_add_u32 s{sM}, s{sM}, s{sXc}"); g(f"s_cmp_ge_u32 s{sM}, 9"); g(f"s_cselect_b32 s{sA}, 9, 0"); g(f"s_sub_u32 s{sM}, s{sM}, s{sA}")
            g(f"s_and_b32 s{sA}, s{sJ}, 1"); g(f"s_cmp_eq_u32 s{sA}, 1")
            g(f"s_cselect_b32 s{sKV}, s{sKA+6}, s{sKA+4}")
            g(f"s_cselect_b32 s{sKV+1}, s{sKA+7}, s{sKA+5}")
            g(f"s_and_b32 s{sKV+1}, s{sKV+1}, 0xffff")
            g(f"s_mov_b32 s{sKV+2}, {D*DH*2}"); g(f"s_mov_b32 s{sKV+3}, 0x20000")
            g(f"s_mov_b32 s{sCt}, 9")
            g.label("L_wkv")
            g(f"s_mul_i32 s{sA}, s{sM}, 3"); g(f"s_add_u32 s{sA}, s{sA}, s{sU}")
            g(f"s_cmp_ge_u32 s{sA}, 25"); g("s_cbranch_scc1 L_wkv_s")
            g(f"s_lshl_b32 s{sA}, s{sA}, 10")
            g(f"s_add_u32 m0, s{sA}, {L_WKV}")
            g("s_nop 0")
            g(f"buffer_load_dwordx4 v{vL}, {S(sKV,4)}, s{sA} offen lds")
            g.label("L_wkv_s")
            g(f"s_add_u32 s{sM}, s{sM}, 1"); g(f"s_cmp_eq_u32 s{sM}, 9"); g(f"s_cselect_b32 s{sM}, 0, s{sM}")
            g(f"s_sub_u32 s{sCt}, s{sCt}, 1"); g(f"s_cmp_lg_u32 s{sCt}, 0"); g("s_cbranch_scc1 L_wkv")
            if k.kvprio: g("s_setprio 0")
        for u in range(5):
            g(f"v_add_u32 v{vA}, {64*u}, v0")
            g(f"v_mul_u32_u24 v{vB}, 52429, v{vA}")
            g(f"v_lshrrev_b32 v{vB}, 19, v{vB}")
            g(f"v_mul_u32_u24 v{vC}, 10, v{vB}")
            g(f"v_sub_u32 v{vA}, v{vA}, v{vC}")
            g(f"v_lshlrev_b32 v{vWo[u]}, 4, v{vA}")
            g(f"v_bfe_u32 v{vA}, v{vB}, 2, 2")
            g(f"v_lshlrev_b32 v{vA}, 3, v{vA}")
            g(f"v_lshrrev_b32 v{vC}, 4, v{vB}")
            g(f"v_lshl_add_u32 v{vA}, v{vC}, 2, v{vA}")
            g(f"v_and_b32 v{vC}, 3, v{vB}")
            g(f"v_add_u32 v{vA}, v{vA}, v{vC}")
            g(f"v_mul_u32_u24 v{vA}, 1280, v{vA}")
            g(f"v_add_u32 v{vWo[u]}, v{vWo[u]}, v{vA}")
    srd(g, sWQ, sKA+2, sKA+3, D*D*2)
    srd(g, sW1, sKA+8, sKA+9, S_TOK*F*2)
    if k.xrot2: g(f"s_add_u32 s{sM}, s{sI}, s{sXc}"); g(f"s_and_b32 s{sM}, s{sM}, 3")
    else: g(f"s_and_b32 s{sM}, s{sI}, 3")
    g(f"s_mul_i32 s{sM}, s{sM}, 5"); g(f"s_add_u32 s{sM}, s{sM}, s{sU}")
    g(f"s_mul_i32 s{sC}, s{sJ}, 160")
    sSl = ds()
    g(f"s_mov_b32 s{sSl}, s{sU}")
    def wq_block():
        g(f"s_cmp_ge_u32 s{sM}, 20"); g(f"s_cselect_b32 s{sA}, 20, 0"); g(f"s_sub_u32 s{sM}, s{sM}, s{sA}")
        g(f"s_mul_i32 s{sB}, s{sM}, 40960"); g(f"s_add_u32 s{sB}, s{sB}, s{sC}")
        if prog: g(f"s_mul_i32 s{sA}, s{sSl}, 5120")
        else:    g(f"s_mul_i32 s{sA}, s{sM}, 5120")
        for u in range(5):
            g(f"s_add_u32 m0, s{sA}, {L_WQ + u*1024}")
            g("s_nop 0")
            g(f"buffer_load_dwordx4 v{vWo[u]}, {S(sWQ,4)}, s{sB} offen lds")
        g(f"s_add_u32 s{sM}, s{sM}, 3"); g(f"s_add_u32 s{sSl}, s{sSl}, 3")
    if k.kvself: lds_spin(k, vCn2, CNT_KVI, vA, sA, sB, 1)
    if k.stage:
        if k.kvdiag: g(f"s_memtime s[{STB+12}:{STB+13}]")
        g("s_waitcnt vmcnt(0)")
        if k.kvdiag: g(f"s_memtime s[{STB+14}:{STB+15}]")
        lds_signal(g, vCn2, vOn2, CNT_WKV)
        lds_spin(k, vCn2, CNT_X0, vA, sA, sB, 1)
    wq_block()
    if not k.kvself and not k.stage:
        g("s_waitcnt vmcnt(5)")
    k.stamp("G2", "wkvland")
    if not k.kvself and not k.stage: lds_signal(g, vCn2, vOn2, CNT_WKV)
    g(f"s_mov_b32 s{sCt}, 4")
    g.label("L_wq")
    wq_block()
    g(f"s_sub_u32 s{sCt}, s{sCt}, 1"); g(f"s_cmp_lg_u32 s{sCt}, 0"); g("s_cbranch_scc1 L_wq")
    g("s_waitcnt vmcnt(10)")
    lds_signal(g, vCn2, vOn2, CNT_WQA)
    wq_block()
    g(f"s_cmp_eq_u32 s{sU}, 2"); g("s_cbranch_scc1 L_wq_last")
    wq_block()
    g.label("L_wq_last")
    g("s_waitcnt vmcnt(5)")
    lds_signal(g, vCn2, vOn2, CNT_WQB)
    k.stamp("G2", "dmaiss")
    g("s_waitcnt vmcnt(0) lgkmcnt(0)")
    nonce_hash(g)
    lds_signal(g, vCn2, vOn2, CNT_WQ)
    k.stamp("G2", "dmaland")
    g(f"s_lshl_b32 s{sA}, s{sN}, 6")
    g(f"v_add_u32 v{vA}, s{sA}, v0")
    g(f"v_mul_u32_u24 v{vA}, {F*2}, v{vA}")
    g(f"s_and_b32 s{sB}, s{sXc}, 3"); g(f"s_mul_i32 s{sB}, s{sB}, 768")
    g(f"s_lshl_b32 s{sA}, s{sU}, 8"); g(f"s_add_u32 s{sB}, s{sB}, s{sA}")
    for q in range(2 if w1probe else 0):
        g(f"buffer_load_dword v255, v{vA}, {S(sW1,4)}, s{sB} offen offset:{128*q}")
    if k.gpoll:
        g(f"s_cmp_lg_u32 s{sW}, 4"); g("s_cbranch_scc1 L_nopoll")
        vF4 = da(4, 4)
        g(f"v_lshlrev_b32 v{vA}, {FSH}, v0")
        g(f"s_mov_b32 s{sA}, {WS_KVF}")
        if k.pack4: poll_flags(k, vA, f"s{sA}", vF4, 4, sB, sleep=ksleep)
        else: poll_flags4(k, vA, sA, vF4, sB, sC, sleep=ksleep)
        if k.nobar: lds_signal(g, vCn2, vOn2, CNT_KVF)
        g.label("L_nopoll")
    if not k.nobar: g("s_barrier")
    g("s_branch L_gemm")
    if k.lay:
        k.deferred = g.L; g.L = main_lines

def attention(k, niter=8, pos=0, kvrot=1):
    g = k.g
    va = Alloc(1, 255, "v"); sa = Alloc(SFREE+2, STB, "s")
    QloA = va(4,4); QloB = va(4,4); QhiA = va(2,2); QhiB = va(2,2)
    KB = [(va(4,4), va(2,2)) for _ in range(2)]
    VB = [va(8,4) for _ in range(2)]
    SA = va(16,4); SB = va(16,4); PA = va(8,4); PB = va(8,4); OA = va(16,4); OB = va(16,4)
    vKlo = va(); vKhi = va(); vV = va(); vL16 = va(); vCnt = va(); vOne = va()
    vT0 = va(); vT1 = va(); vT2 = va(); vT3 = va(); vC = va(2,2); vKm = va(2,2); vF = va(4,4)
    vAd = [va() for _ in range(5)]; vSig = va()
    sT0 = sa(); sT1 = sa(); sT2 = sa(); sIt = sa(); sTgt = sa(); sQ = sa(); sDm = sa(); sInc = sa(); sSp = sa(); sIdx = sa(); sCn = sa(); sIncW = sa(); sIncN = sa()
    dma_first = k.dfirst and k.gpoll and not k.nobar
    def issue_kv():
        k.stamp("A", "kvflags")
        g(f"v_lshlrev_b32 v{vT0}, 3, v0")
        g(f"s_mov_b32 s{sT1}, {WS_KMAX}")
        g(f"buffer_load_dwordx2 {V(vKm,2)}, v{vT0}, {S(sWS,4)}, s{sT1} offen sc1")
        def kv_dma(c):
            if kvrot:
                t = k.tag("dm")
                g(f"s_mov_b32 s{sCn}, 11")
                g.label(f"L_{t}")
                g(f"s_lshl_b32 s{sT0}, s{sIdx}, 2"); g(f"s_add_u32 s{sT0}, s{sT0}, s{sW}")
                g(f"s_cmp_ge_u32 s{sT0}, 42"); g(f"s_cbranch_scc1 L_{t}_s")
                g(f"s_lshl_b32 s{sT0}, s{sT0}, 10")
                g(f"s_add_u32 m0, s{sT0}, {L_KV + c*CHUNK}")
                g(f"s_add_u32 s{sT1}, s{sT0}, {WS_KV + c*CHUNK}")
                g(f"buffer_load_dwordx4 v{vL16}, {S(sWS,4)}, s{sT1} offen sc1 lds")
                g.label(f"L_{t}_s")
                g(f"s_add_u32 s{sIdx}, s{sIdx}, 1"); g(f"s_cmp_eq_u32 s{sIdx}, 11"); g(f"s_cselect_b32 s{sIdx}, 0, s{sIdx}")
                g(f"s_sub_u32 s{sCn}, s{sCn}, 1"); g(f"s_cmp_lg_u32 s{sCn}, 0"); g(f"s_cbranch_scc1 L_{t}")
            else:
                t = k.tag("dm")
                g(f"s_lshl_b32 s{sT0}, s{sW}, 10"); g(f"s_add_u32 s{sT1}, s{sT0}, {WS_KV + c*CHUNK}")
                for nn in range(11):
                    if nn == 10: g(f"s_cmp_ge_u32 s{sW}, 2"); g(f"s_cbranch_scc1 L_{t}")
                    g(f"s_add_u32 m0, s{sT0}, {L_KV + c*CHUNK + nn*4096}")
                    if nn: g(f"s_add_u32 s{sT1}, s{sT1}, 4096")
                    else: g("s_nop 0")
                    g(f"buffer_load_dwordx4 v{vL16}, {S(sWS,4)}, s{sT1} offen sc1 lds")
                g.label(f"L_{t}")
        g(f"s_mul_i32 s{sIdx}, s{sN}, 47"); g(f"s_lshr_b32 s{sIdx}, s{sIdx}, 9")
        g(f"s_mul_i32 s{sIdx}, s{sIdx}, 11"); g(f"s_sub_u32 s{sIdx}, s{sN}, s{sIdx}")
        kv_dma(0)
        if k.gate2 == 2: lds_signal(g, vCnt, vOne, CNT_GATE)
        kv_dma(1)
        if k.gate2 == 1: lds_signal(g, vCnt, vOne, CNT_GATE)
        if k.kvprobe:
            g(f"s_cmp_lg_u32 s{sW}, 0"); g("s_cbranch_scc1 L_att_nopr")
            g(f"s_mul_i32 s{sT0}, s{sN}, {21*128}"); g(f"s_add_u32 s{sT0}, s{sT0}, {WS_KV + 2*CHUNK}")
            g(f"v_lshlrev_b32 v{vT0}, 7, v0")
            g("s_mov_b64 exec, 0x1fffff")
            g(f"buffer_load_dword v255, v{vT0}, {S(sWS,4)}, s{sT0} offen")
            g("s_mov_b64 exec, -1")
            g.label("L_att_nopr")
    g.label("L_attn")
    g(f"v_lshlrev_b32 v{vL16}, 4, v0")
    if dma_first:
        g(f"v_mov_b32 v{vCnt}, {L_CNT}"); g(f"v_mov_b32 v{vOne}, 1")
        issue_kv()
    g(f"s_mov_b32 s{sIncW}, {(-3*8*KV_TILE) & 0xffffffff}"); g(f"s_mov_b32 s{sIncN}, {8*KV_TILE}")
    g(f"s_mul_i32 s{sT0}, s{sW}, 2560"); g(f"s_add_u32 s{sT0}, s{sT0}, {L_QX}")
    g(f"v_add_u32 v{vT0}, s{sT0}, v{vL16}")
    g(f"v_and_b32 v{vT1}, 31, v0")
    g(f"v_lshlrev_b32 v{vT2}, 3, v{vT1}")
    g(f"v_add_u32 v{vT2}, s{sT0}, v{vT2}")
    g(f"ds_read_b128 {V(QloA,4)}, v{vT0}")
    g(f"ds_read_b128 {V(QloB,4)}, v{vT0} offset:1280")
    g(f"ds_read_b64 {V(QhiA,2)}, v{vT2} offset:1024")
    g(f"ds_read_b64 {V(QhiB,2)}, v{vT2} offset:2304")
    g(f"v_mov_b32 v{vKlo}, v{vL16}")
    g(f"v_and_b32 v{vT0}, 31, v0")
    g(f"v_lshlrev_b32 v{vKhi}, 3, v{vT0}")
    g(f"v_add_u32 v{vKhi}, {KV_KHI}, v{vKhi}")
    g(f"v_mov_b32 v{vT1}, {KV_V + ONES_SLOT*16}")
    g(f"v_cmp_le_u32 vcc, 32, v0"); g.nop(2)
    g(f"v_cndmask_b32 v{vKhi}, v{vKhi}, v{vT1}, vcc")
    g(f"v_lshrrev_b32 v{vT1}, 3, v{vT0}")
    g(f"v_and_b32 v{vT2}, 3, v{vT0}")
    g(f"v_lshl_add_u32 v{vT1}, v{vT1}, 2, v{vT2}")
    g(f"v_bfe_u32 v{vT2}, v{vT0}, 2, 1")
    g(f"v_mul_u32_u24 v{vT2}, 10, v{vT2}")
    g(f"v_add_u32 v{vT2}, v{vT2}, v{vT1}")
    g(f"v_add_u32 v{vT3}, 7, v{vT2}")
    g(f"v_cmp_gt_u32 vcc, 4, v{vT2}"); g.nop(2)
    g(f"v_cndmask_b32 v{vT3}, v{vT3}, v{vT2}, vcc")
    g(f"v_subrev_u32 v{vC}, 10, v{vT2}")
    g(f"v_cmp_le_u32 vcc, 14, v{vT2}"); g.nop(2)
    g(f"v_cndmask_b32 v{vT3}, v{vT3}, v{vC}, vcc")
    g(f"v_mov_b32 v{vC}, {ONES_SLOT}")
    g(f"v_cmp_eq_u32 vcc, 10, v{vT1}"); g.nop(2)
    g(f"v_cndmask_b32 v{vT3}, v{vT3}, v{vC}, vcc")
    g(f"v_mov_b32 v{vC}, {ZERO_SLOT}")
    g(f"v_cmp_lt_u32 vcc, 10, v{vT1}"); g.nop(2)
    g(f"v_cndmask_b32 v{vT3}, v{vT3}, v{vC}, vcc")
    g(f"v_lshrrev_b32 v{vT2}, 5, v0")
    g(f"v_mul_u32_u24 v{vT2}, {V_KH}, v{vT2}")
    g(f"v_lshl_add_u32 v{vV}, v{vT3}, 4, v{vT2}")
    g(f"v_add_u32 v{vV}, {KV_V}, v{vV}")
    g(f"v_mov_b32 v{vCnt}, {L_CNT}")
    g(f"v_mov_b32 v{vOne}, 1")
    for r in range(16): g(f"v_mov_b32 v{OA+r}, 0"); g(f"v_mov_b32 v{OB+r}, 0")
    for r in range(8): g(f"v_mov_b32 v{PB+r}, 0"); g(f"v_mov_b32 v{VB[1]+r}, 0")
    g(f"v_and_b32 v{vT0}, 31, v0")
    g(f"v_lshrrev_b32 v{vT1}, 5, v0")
    g(f"s_mul_i32 s{sT0}, s{sW}, 20")
    g(f"v_mul_u32_u24 v{vT1}, 10, v{vT1}")
    g(f"v_add_u32 v{vT1}, s{sT0}, v{vT1}")
    for u in range(5):
        g(f"v_add_u32 v{vT2}, {2*u}, v{vT1}")
        g(f"v_lshrrev_b32 v{vT3}, 3, v{vT2}")
        g(f"v_lshlrev_b32 v{vT3}, 9, v{vT3}")
        g(f"v_lshl_add_u32 v{vT3}, v{vT0}, 4, v{vT3}")
        g(f"v_and_b32 v{vT2}, 7, v{vT2}")
        g(f"v_lshl_add_u32 v{vAd[u]}, v{vT2}, 1, v{vT3}")
        g(f"v_add_u32 v{vAd[u]}, {L_OA}, v{vAd[u]}")
    g("s_waitcnt lgkmcnt(0)")
    g("s_mov_b32 exec_lo, 0")
    for r in range(2): g(f"v_mov_b32 v{QhiA+r}, 0"); g(f"v_mov_b32 v{QhiB+r}, 0")
    g("s_mov_b32 exec_lo, -1")
    g(f"v_mov_b32 v{vCnt}, {L_CNT}"); g(f"v_mov_b32 v{vOne}, 1")
    if k.nobar: lds_spin(k, vCnt, CNT_KVF, vC, sT2, sSp, 1)
    if not k.gpoll:
        g(f"v_lshlrev_b32 v{vT0}, {FSH}, v0")
        g(f"s_lshl_b32 s{sT1}, s{sW}, {6+FSH}"); g(f"s_add_u32 s{sT1}, s{sT1}, {WS_KVF}")
        poll_flags(k, vT0, f"s{sT1}", vF, 1, sCn)
        lds_signal(g, vCnt, vOne, CNT_KVF)
        lds_spin(k, vCnt, CNT_KVF, vC, sT2, sSp, 4)
    if not dma_first: issue_kv()
    g("s_waitcnt vmcnt(20)")
    g(f"v_max_f32 v{vKm}, v{vKm}, v{vKm+1}")
    for rot in (8, 4, 2, 1):
        g.nop(2); g(f"v_max_f32_dpp v{vKm}, v{vKm}, v{vKm} row_ror:{rot} row_mask:0xf bank_mask:0xf")
    xreduce(g, vKm, vT0, "v_max_f32")
    for (lo, hi, dst) in ((QloA, QhiA, vT1), (QloB, QhiB, vT2)):
        g(f"v_mov_b32 v{dst}, 0")
        for r in range(4): g(f"v_dot2c_f32_bf16 v{dst}, v{lo+r}, v{lo+r}")
        for r in range(2): g(f"v_dot2c_f32_bf16 v{dst}, v{hi+r}, v{hi+r}")
        g.nop(3)
        xreduce(g, dst, vT0, "v_add_f32", (32,))
    g(f"v_max_f32 v{vT1}, v{vT1}, v{vT2}")
    g(f"v_mul_f32 v{vT1}, v{vT1}, v{vKm}")
    g(f"v_mov_b32 v{vT2}, {f32(TBOUND2)}")
    g(f"v_cmp_nle_f32 vcc, v{vT1}, v{vT2}")
    g.nop(5)
    if k.lay:
        g("s_cbranch_vccnz L_att_slow")
        g.label("L_att_fast")
        fast_lines = g.L; g.L = []
        g.label("L_att_slow")
    else:
        g("s_cbranch_vccz L_att_fast")
    vMA = vT1; vMB = vT2
    g(f"v_mov_b32 v{vMA}, 0xff800000"); g(f"v_mov_b32 v{vMB}, 0xff800000")
    g(f"s_mov_b32 s{sT2}, {WS_KV}"); g(f"s_mov_b32 s{sIt}, 64")
    g.label("L_att_smax")
    g(f"buffer_load_dwordx4 {V(KB[0][0],4)}, v{vKlo}, {S(sWS,4)}, s{sT2} offen sc1")
    g(f"buffer_load_dwordx2 {V(KB[0][1],2)}, v{vKhi}, {S(sWS,4)}, s{sT2} offen sc1")
    g("s_waitcnt vmcnt(0)")
    g(f"v_mfma_f32_32x32x16_bf16 {V(SA,16)}, {V(KB[0][0],4)}, {V(QloA,4)}, 0")
    g(f"v_mfma_f32_32x32x16_bf16 {V(SB,16)}, {V(KB[0][0],4)}, {V(QloB,4)}, 0")
    g(f"v_mfma_f32_32x32x8_bf16 {V(SA,16)}, {V(KB[0][1],2)}, {V(QhiA,2)}, {V(SA,16)}")
    g(f"v_mfma_f32_32x32x8_bf16 {V(SB,16)}, {V(KB[0][1],2)}, {V(QhiB,2)}, {V(SB,16)}")
    g.nop(16)
    for r in range(0, 16, 2):
        g(f"v_max3_f32 v{vMA}, v{SA+r}, v{SA+r+1}, v{vMA}")
        g(f"v_max3_f32 v{vMB}, v{SB+r}, v{SB+r+1}, v{vMB}")
    g(f"s_add_u32 s{sT2}, s{sT2}, {KV_TILE}")
    g(f"s_sub_u32 s{sIt}, s{sIt}, 1"); g(f"s_cmp_lg_u32 s{sIt}, 0")
    g("s_cbranch_scc1 L_att_smax")
    for (m, hi) in ((vMA, QhiA), (vMB, QhiB)):
        xreduce(g, m, vT0, "v_max_f32", (32,))
        g(f"v_xor_b32 v{m}, 0x80000000, v{m}")
        g(f"v_and_b32 v{vT3}, 0xffff0000, v{m}")
        g(f"v_sub_f32 v{m}, v{m}, v{vT3}")
        g(f"v_and_b32 v{vC}, 0xffff0000, v{m}")
        g(f"v_sub_f32 v{m}, v{m}, v{vC}")
        g(f"v_lshrrev_b32 v{vT3}, 16, v{vT3}")
        g(f"v_or_b32 v{vT3}, v{vT3}, v{vC}")
        g(f"v_lshrrev_b32 v{m}, 16, v{m}")
        g("s_mov_b32 exec_lo, 0")
        g(f"v_mov_b32 v{hi}, v{vT3}"); g(f"v_mov_b32 v{hi+1}, v{m}")
        g("s_mov_b32 exec_lo, -1")
    if k.lay:
        g("s_branch L_att_fast")
        slow_lines = g.L; g.L = fast_lines
    else:
        g.label("L_att_fast")
    g(f"s_waitcnt vmcnt({14 if k.estart else 10})")
    lds_signal(g, vCnt, vOne, CNT_RD0)
    lds_spin(k, vCnt, CNT_RD0, vC, sT2, sSp, 4)
    k.stamp("A", "kv0"); k.stamp("A", "rkv0", real=True)
    def rd_k(p, off):
        g(f"ds_read_b128 {V(KB[p][0],4)}, v{vKlo} offset:{off}")
        g(f"ds_read_b64 {V(KB[p][1],2)}, v{vKhi} offset:{off}")
    def rd_v(p, off):
        g(f"ds_read_b128 {V(VB[p],4)}, v{vV} offset:{off}")
        g(f"ds_read_b128 {V(VB[p]+4,4)}, v{vV} offset:{off+V_JJ}")
    def qk(Sr, Qlo, Qhi, p):
        return [f"v_mfma_f32_32x32x16_bf16 {V(Sr,16)}, {V(KB[p][0],4)}, {V(Qlo,4)}, 0",
                f"v_mfma_f32_32x32x8_bf16 {V(Sr,16)}, {V(KB[p][1],2)}, {V(Qhi,2)}, {V(Sr,16)}"]
    def pv(O, P, p):
        return [f"v_mfma_f32_32x32x16_bf16 {V(O,16)}, {V(VB[p],4)}, {V(P,4)}, {V(O,16)}",
                f"v_mfma_f32_32x32x16_bf16 {V(O,16)}, {V(VB[p]+4,4)}, {V(P+4,4)}, {V(O,16)}"]
    def ex(Sr, P):
        e = [f"v_exp_f32 v{Sr+r}, v{Sr+r}" for r in range(16)]
        c = [f"v_cvt_pk_bf16_f32 v{P+kk}, v{Sr+2*kk}, v{Sr+2*kk+1}" for kk in range(8)]
        if pos >= 7: return e, c
        seq = [e[0], e[1]]
        for kk in range(7): seq += [e[2*kk+2], c[kk], e[2*kk+3]]
        return seq, [c[7]]
    POS = {0: (5, 11, 17), 1: (3, 12, 15), 2: (3, 6, 9), 3: (4, 12, 16), 4: (4, 9, 13), 5: (4, 8, 12), 6: (5, 9, 13), 7: (3, 7, 10), 8: (3, 10, 13)}[pos]
    def phase(valu, pend, mf):
        out = []
        if pend: out += pend
        out.append(mf[0]); out += valu[0:POS[0]]; out.append(mf[1]); out += valu[POS[0]:POS[1]]; out.append(mf[2])
        out += valu[POS[1]:POS[2]]; out.append(mf[3]); out += valu[POS[2]:]
        for x in out: g(x)
    rd_k(0, 0)
    g("s_waitcnt lgkmcnt(0)")
    for x in qk(SA, QloA, QhiA, 0): g(x)
    g(f"s_mov_b32 s{sIt}, 0")
    g(f"s_mov_b32 s{sTgt}, 4")
    g(f"v_lshlrev_b32 v{vSig}, 2, v0"); g(f"v_add_u32 v{vSig}, {L_SCR}, v{vSig}")
    g(f"v_cmp_eq_u32 vcc, 0, v0"); g.nop(2)
    g(f"v_cndmask_b32 v{vSig}, v{vSig}, v{vCnt}, vcc")
    g.nop(7)
    if k.aprio: g(f"s_setprio {k.aprio}")
    g.raw(".p2align 6")
    g.label("L_att_loop")
    g(f"s_bitcmp1_b32 0x88, s{sIt}")
    g(f"s_cselect_b32 s{sInc}, s{sIncW}, s{sIncN}")
    pend = None
    for t in range(8):
        p = t % 2
        if t == 4:
            if k.estart:
                g(f"s_cmp_eq_u32 s{sIt}, 0"); g("s_cbranch_scc1 L_att_w0")
            g("s_waitcnt vmcnt(0)")
            if k.estart: g.label("L_att_w0_ret")
            g(f"ds_add_u32 v{vSig}, v{vOne} offset:{CNT_READY}")
        if t == 5:
            g(f"s_bitcmp1_b32 {0 if k.exp_nodma else 0x14}, s{sIt}")
            g("s_cbranch_scc1 L_att_dma")
            g.label("L_att_dma_ret")
        if t == 7:
            g(f"v_readfirstlane_b32 s{sT2}, v{vC}")
            g(f"s_cmp_ge_u32 s{sT2}, s{sTgt}")
            g("s_cbranch_scc0 L_att_rdy")
            g.label("L_att_rdy_ret")
        if t == 7:
            g(f"v_add_u32 v{vKlo}, s{sInc}, v{vKlo}"); g(f"v_add_u32 v{vKhi}, s{sInc}, v{vKhi}")
            rd_k(1-p, 0)
        else:
            rd_k(1-p, (t+1)*KV_TILE)
        rd_v(p, t*KV_TILE)
        if t == 7: g(f"v_add_u32 v{vV}, s{sInc}, v{vV}")
        if t == 6: g(f"ds_read_b32 v{vC}, v{vCnt} offset:{CNT_READY}")
        va_, lastA = ex(SA, PA)
        phase(va_, pend, qk(SB, QloB, QhiB, p) + pv(OB, PB, 1-p))
        pend = lastA
        g("s_waitcnt lgkmcnt(0)")
        if t == 7: g(f"ds_add_u32 v{vSig}, v{vOne} offset:{CNT_FREE}")
        vb_, lastB = ex(SB, PB)
        phase(vb_, pend, qk(SA, QloA, QhiA, 1-p) + pv(OA, PA, p))
        pend = lastB
    g(f"s_add_u32 s{sIt}, s{sIt}, 1")
    for x in pend: g(x)
    g(f"s_add_u32 s{sTgt}, s{sTgt}, 4")
    g(f"s_cmp_lt_u32 s{sIt}, {niter}")
    g("s_cbranch_scc1 L_att_loop")
    g("s_branch L_att_fin")
    g.label("L_att_dma")
    if k.dprio: g(f"s_setprio {k.dprio}")
    g(f"s_lshl_b32 s{sDm}, s{sIt}, 2")
    lds_spin(k, vCnt, CNT_FREE, vT0, sT2, sSp, f"s{sDm}")
    g(f"s_lshr_b32 s{sT0}, s{sIt}, 1"); g(f"s_add_u32 s{sT0}, s{sT0}, 1")
    g(f"s_mul_i32 s{sDm}, s{sT0}, {CHUNK}"); g(f"s_add_u32 s{sDm}, s{sDm}, {WS_KV}")
    g(f"s_and_b32 s{sT0}, s{sT0}, 1"); g(f"s_mul_i32 s{sT2}, s{sT0}, {CHUNK}")
    g(f"s_lshl_b32 s{sT0}, s{sW}, 10")
    g(f"s_add_u32 s{sDm}, s{sDm}, s{sT0}"); g(f"s_add_u32 s{sT2}, s{sT2}, s{sT0}")
    for nn in range(10):
        g(f"s_add_u32 m0, s{sT2}, {L_KV + nn*4096}")
        if nn: g(f"s_add_u32 s{sDm}, s{sDm}, 4096")
        else: g("s_nop 0")
        g(f"buffer_load_dwordx4 v{vL16}, {S(sWS,4)}, s{sDm} offen sc1 lds")
    g(f"s_cmp_ge_u32 s{sW}, 2"); g("s_cbranch_scc1 L_att_dma_x")
    g(f"s_add_u32 m0, s{sT2}, {L_KV + 10*4096}")
    g(f"s_add_u32 s{sDm}, s{sDm}, 4096")
    g(f"buffer_load_dwordx4 v{vL16}, {S(sWS,4)}, s{sDm} offen sc1 lds")
    g.label("L_att_dma_x")
    if k.dprio: g(f"s_setprio {k.aprio}")
    g("s_branch L_att_dma_ret")
    if k.estart:
        g.label("L_att_w0")
        g("s_waitcnt vmcnt(10)")
        g("s_branch L_att_w0_ret")
    g.label("L_att_rdy")
    lds_spin(k, vCnt, CNT_READY, vT0, sT2, sSp, f"s{sTgt}")
    g("s_branch L_att_rdy_ret")
    g.label("L_att_fin")
    k.stamp("A", "loopend"); k.stamp("A", "rloopend", real=True)
    g.nop(1)
    for x in pv(OB, PB, 1): g(x)
    g.nop(8)
    g.nop(4)
    for ss, O in ((0, OA), (1, OB)):
        g(f"v_rcp_f32 v{vT2}, v{O+10}"); g.nop(1)
        for r in range(10): g(f"v_mul_f32 v{O+r}, v{O+r}, v{vT2}")
        for u in range(5): g(f"v_cvt_pk_bf16_f32 v{O+u}, v{O+2*u}, v{O+2*u+1}")
        for u in range(5): g(f"ds_write_b32 v{vAd[u]}, v{O+u} offset:{ss*5120}")
    g("s_waitcnt lgkmcnt(0)")
    lds_signal(g, vCnt, vOne, CNT_OAS)
    lds_spin(k, vCnt, CNT_OAS, vC, sT2, sSp, 4)
    g(f"s_mul_i32 s{sQ}, s{sI}, 80"); g(f"s_mul_i32 s{sT0}, s{sJ}, 5"); g(f"s_add_u32 s{sQ}, s{sQ}, s{sT0}")
    g(f"s_lshl_b32 s{sQ}, s{sQ}, 10"); g(f"s_add_u32 s{sQ}, s{sQ}, {WS_OF}")
    g(f"s_lshl_b32 s{sT1}, s{sW}, 10")
    g(f"v_add_u32 v{vT0}, s{sT1}, v{vL16}")
    g(f"v_add_u32 v{vT0}, {L_OA}, v{vT0}")
    for nn in range(3): g(f"ds_read_b128 {V(SA+4*nn,4)}, v{vT0} offset:{4096*nn}")
    sO = [sT1, sT2, sDm]
    for nn in range(3):
        g(f"s_add_u32 s{sT0}, s{sW}, {4*nn}")
        g(f"s_cmp_ge_u32 s{sT0}, 5"); g(f"s_cselect_b32 s{sTgt}, {40960-5120}, 0")
        g(f"s_lshl_b32 s{sT0}, s{sT0}, 10"); g(f"s_add_u32 s{sT0}, s{sT0}, s{sTgt}")
        g(f"s_add_u32 s{sO[nn]}, s{sT0}, s{sQ}")
    g("s_waitcnt lgkmcnt(0)")
    for nn in range(3):
        if nn == 2: g(f"s_cmp_ge_u32 s{sW}, 2"); g("s_cbranch_scc1 L_att_st")
        g(f"buffer_store_dwordx4 {V(SA+4*nn,4)}, v{vL16}, {S(sWS,4)}, s{sO[nn]} offen sc1")
    g.label("L_att_st")
    g(f"s_lshl_b32 s{sT0}, s{sI}, 3"); g(f"s_add_u32 s{sT0}, s{sT0}, s{sJ}"); g(f"s_lshl_b32 s{sT0}, s{sT0}, 2")
    g(f"s_add_u32 s{sT0}, s{sT0}, s{sW}"); g(f"s_lshl_b32 s{sT0}, s{sT0}, {FSH}"); g(f"s_add_u32 s{sT0}, s{sT0}, {WS_OFL}")
    g("s_waitcnt vmcnt(0)")
    write_flag(g, sT0, vT0, vT1)
    k.stamp("A", "oflag")
    g(f"s_or_b32 s{sT0}, s2, s{sW}"); g(f"s_cmp_lg_u32 s{sT0}, 0"); g("s_cbranch_scc1 L_att_end")
    g(f"s_mov_b32 s{sT0}, {WS_NONCE}")
    write_flag(g, sT0, vT0, vT1)
    g.label("L_att_end")
    if k.kvdiag:
        k.names["A"] = k.names["A"][:14]
    k.dump("A", sT0, vT0, vT1)
    if k.kvdiag:
        k.names["A"] += ["kv_wk", "kv_proj", "kv_st"]
        g("s_mov_b64 exec, 1")
        for i_ in (16, 17, 18):
            g(f"v_mov_b32 v{vT0}, s{STB+2*i_}")
            g(f"buffer_store_dword v{vT0}, v{vT1}, s[{sWS}:{sWS+3}], s{sT0} offen offset:{4*i_}")
        g("s_mov_b64 exec, -1")
    g("s_endpgm")
    if k.lay: g.L += slow_lines
    return va.p

def tr_addr_128(g, vdst0, vdst1, mode, vt0, vt1, vt2, s_ring):
    g(f"v_bfe_u32 v{vt0}, v0, 2, 2")
    g(f"v_lshrrev_b32 v{vt1}, 5, v0")
    g(f"v_lshlrev_b32 v{vt1}, {3 if mode=='nat' else 2}, v{vt1}")
    g(f"v_add_u32 v{vt1}, v{vt1}, v{vt0}")
    g(f"v_lshlrev_b32 v{vdst0}, 7, v{vt1}")
    g(f"v_bfe_u32 v{vt1}, v0, 4, 1")
    g(f"v_bfe_u32 v{vt2}, v0, 1, 1")
    g(f"v_lshl_add_u32 v{vt1}, v{vt1}, 1, v{vt2}")
    g(f"v_lshrrev_b32 v{vt0}, 1, v{vt0}")
    g(f"v_lshlrev_b32 v{vt0}, 2, v{vt0}")
    g(f"v_xor_b32 v{vt1}, v{vt1}, v{vt0}")
    g(f"v_lshl_add_u32 v{vdst0}, v{vt1}, 4, v{vdst0}")
    g(f"v_and_b32 v{vt2}, 1, v0")
    g(f"v_lshl_add_u32 v{vdst0}, v{vt2}, 3, v{vdst0}")
    g(f"v_add_u32 v{vdst0}, s{s_ring}, v{vdst0}")
    g(f"v_xor_b32 v{vdst1}, 64, v{vdst0}")

def dma_voff_128(g, vdst, pitch, vt0, vt1):
    g(f"v_lshrrev_b32 v{vt0}, 3, v0")
    g(f"v_bfe_u32 v{vt1}, v0, 4, 1")
    g(f"v_lshlrev_b32 v{vt1}, 2, v{vt1}")
    g(f"v_and_b32 v{vdst}, 7, v0")
    g(f"v_xor_b32 v{vdst}, v{vdst}, v{vt1}")
    g(f"v_lshlrev_b32 v{vdst}, 4, v{vdst}")
    g(f"v_mul_u32_u24 v{vt0}, {pitch}, v{vt0}")
    g(f"v_add_u32 v{vdst}, v{vdst}, v{vt0}")

def stream_gemm(k, tag, nsteps, depth, pitch, sT_srd, sTso, vTsrc, sRing, vTr, TB, mode,
                sDso, vDsrc, DR, nd, acc, tr_is_A, sCnt, first_zero=True, rot=None):
    g = k.g
    nv = 2 + nd
    toff = 512 if mode == "nat" else 1024
    def issue(slot):
        g(f"s_add_u32 m0, s{sRing}, {slot*2048}")
        g("s_nop 0")
        g(f"buffer_load_dwordx4 v{vTsrc}, {S(sT_srd,4)}, s{sTso} offen lds")
        g(f"s_add_u32 m0, s{sRing}, {slot*2048+1024}")
        g(f"s_add_u32 s{sTso}, s{sTso}, {8*pitch}")
        g(f"buffer_load_dwordx4 v{vTsrc}, {S(sT_srd,4)}, s{sTso} offen lds")
        g(f"s_add_u32 s{sTso}, s{sTso}, {8*pitch}")
        for b in range(nd):
            g(f"buffer_load_dwordx4 {V(DR+(slot*nd+b)*4,4)}, v{vDsrc[b]}, {S(sWS,4)}, s{sDso} offen sc1")
        g(f"s_add_u32 s{sDso}, s{sDso}, 1024")
        if rot:
            sPos, sA, sB = rot
            g(f"s_add_u32 s{sPos}, s{sPos}, 1"); g(f"s_cmp_eq_u32 s{sPos}, {nsteps}")
            g(f"s_cselect_b32 s{sA}, {nsteps*16*pitch}, 0"); g(f"s_cselect_b32 s{sB}, {nsteps*1024}, 0")
            g(f"s_cselect_b32 s{sPos}, 0, s{sPos}")
            g(f"s_sub_u32 s{sTso}, s{sTso}, s{sA}"); g(f"s_sub_u32 s{sDso}, s{sDso}, s{sB}")
    def trread(slot, buf):
        for a in range(2):
            for t in range(2):
                g(f"ds_read_b64_tr_b16 {V(TB[buf]+4*a+2*t,2)}, v{vTr[a]} offset:{slot*2048 + t*toff}")
    def mfmas(slot, buf, zero):
        for a in range(2):
            for b in range(nd):
                T = V(TB[buf]+4*a,4); Dd = V(DR+(slot*nd+b)*4,4); c = acc(a,b)
                A_, B_ = (T, Dd) if tr_is_A else (Dd, T)
                g(f"v_mfma_f32_32x32x16_bf16 {V(c,16)}, {A_}, {B_}, {'0' if zero else V(c,16)}")
    assert nsteps % depth == 0 and depth % 2 == 0
    for s in range(depth): issue(s)
    nit = nsteps // depth
    g(f"s_waitcnt vmcnt({nv*(depth-1)})")
    trread(0, 0)
    def body(last, first):
        for s in range(depth):
            nxt = (s+1) % depth
            if not (last and s == depth-1):
                g(f"s_waitcnt vmcnt({nv*(depth-2-s) if last else nv*(depth-2)})")
                trread(nxt, (s+1) % 2)
                g("s_waitcnt lgkmcnt(4)")
            else:
                g("s_waitcnt lgkmcnt(0)")
            mfmas(s, s % 2, first and first_zero and s == 0)
            if not last: issue(s)
    body(False, True); rem = nit - 2
    if rem > 0:
        g(f"s_mov_b32 s{sCnt}, {rem}")
        g.label(f"L_{tag}_loop")
        body(False, False)
        g(f"s_sub_u32 s{sCnt}, s{sCnt}, 1"); g(f"s_cmp_lg_u32 s{sCnt}, 0")
        g(f"s_cbranch_scc1 L_{tag}_loop")
    body(True, False)

def pk(op, d, a, b, c=None, sel=None):
    ops = [V(d,2), a, b] + ([c] if c else [])
    return f"v_pk_{op}_f32 " + ", ".join(ops) + (f" op_sel_hi:{sel}" if sel else "")

def gelu16(g, acc, vb, vt, sC2, vC1, vOnes):
    for r0 in range(0, 16, 8):
        ps = range(r0, r0+8, 2)
        for r in ps: g(pk("add", acc+r, V(acc+r,2), V(vb+r,2)))
        for r in ps: g(pk("mul", vt+r-r0, V(acc+r,2), V(acc+r,2)))
        for r in ps: g(pk("fma", vt+r-r0, V(vt+r-r0,2), S(sC2,2), V(vC1,2), "[1,0,0]"))
        for r in ps: g(pk("mul", vt+r-r0, V(vt+r-r0,2), V(acc+r,2)))
        for r in range(8): g(f"v_exp_f32 v{vt+r}, v{vt+r}")
        for r in ps: g(pk("add", vt+r-r0, V(vt+r-r0,2), V(vOnes,2), None, "[1,0]"))
        for r in range(8): g(f"v_rcp_f32 v{vt+r}, v{vt+r}")
        for r in ps: g(pk("mul", acc+r, V(acc+r,2), V(vt+r-r0,2)))

def div10(g, vq, vr, vin):
    g(f"v_mul_u32_u24 v{vq}, 52429, v{vin}"); g(f"v_lshrrev_b32 v{vq}, 19, v{vq}")
    g(f"v_mul_u32_u24 v{vr}, 10, v{vq}"); g(f"v_sub_u32 v{vr}, v{vin}, v{vr}")

def gemm_waves(k, prio=0, gate=True, eprio=0, e2prio=0, osleep=1, gsleep=1, d1=8, hsleep=2):
    g = k.g
    sa = Alloc(SFREE+2, STB, "s")
    sWa = sa(4); sWb = sa(4); sOut = sa(4); sP = sa(4); sP2 = sa(4); sP3 = sa(4); sC2 = sa(2)
    sG = sa(); sRing = sa(); sTso = sa(); sDso = sa(); sCnt = sa(); sFa = sa(); sDb = sa(); sFl = sa()
    sT0 = sa(); sT1 = sa(); sT2 = sa(); sSp = sa(); sXo = sa(); sWo = sa()
    g.label("L_gemm")
    k.spinsleep = k.gsleep2
    for r in ("G1", "G2"): k.fork(r, r, pad=8)
    if k.stamps and k.kvdiag and k.stage: k.names["G2"][6] = "wkv_iss"; k.names["G2"][7] = "wkv_land"
    if k.xdiag: k.names["G1"] = k.names["G1"][:8]
    if k.stamps: k.names["G"] = ["_"]*8
    def st(name, real=False): k.stamp("G", name, real)
    g(f"s_setprio {prio}")
    if k.gskip == 1: g("s_branch L_gdone")
    g(f"s_load_dwordx4 {S(sP,4)}, s[0:1], {KA_W1}")
    g(f"s_load_dwordx4 {S(sP2,4)}, s[0:1], {KA_W2}")
    g(f"s_load_dwordx2 {S(sP3,2)}, s[0:1], {KA_WO}")
    g(f"s_load_dwordx2 {S(sP3+2,2)}, s[0:1], {KA_X}")
    g(f"s_load_dwordx2 {S(sOut,2)}, s[0:1], {KA_OUT}")
    g(f"s_sub_u32 s{sG}, s{sW}, 4")
    g(f"s_mul_i32 s{sRing}, s{sG}, {RING}"); g(f"s_add_u32 s{sRing}, s{sRing}, {L_RING}")
    va = Alloc(1, 255, "v")
    vCnt = va(); vOne = va(); vL16 = va(); vt = va(8, 4); vWr = va(); vXo = va(); vO1 = va(); vB2 = va()
    RES = va(20, 4)
    vC1 = RES; vOnes = RES+2
    vTsrc1 = RES+4; vTr1 = [RES+5, RES+6]; vD1 = RES+7; vGst = RES+8; vRd = RES+9
    vTsrc2 = RES+10; vTr2 = [RES+11, RES+12]; vD2 = [vL16, RES+13, RES+14]; vGfl = RES+15; vW2p = RES+16
    vXr = va(10, 2); vWsrc = [va() for _ in range(5)]; vWtr = va()
    common_end = va.p
    g(f"s_mul_i32 s{sT1}, s{sN}, 43"); g(f"s_lshr_b32 s{sT1}, s{sT1}, 8")
    g(f"s_mul_i32 s{sT2}, s{sT1}, 6"); g(f"s_sub_u32 s{sFl}, s{sN}, s{sT2}")
    g(f"s_and_b32 s{sFa}, s{sXc}, 3"); g(f"s_mul_i32 s{sFa}, s{sFa}, 6"); g(f"s_add_u32 s{sFa}, s{sFa}, s{sFl}")
    g(f"s_lshr_b32 s{sDb}, s{sXc}, 2"); g(f"s_mul_i32 s{sDb}, s{sDb}, 5"); g(f"s_add_u32 s{sDb}, s{sDb}, s{sT1}")
    g(f"v_lshlrev_b32 v{vL16}, 4, v0")
    g(f"v_mov_b32 v{vCnt}, {L_CNT}"); g(f"v_mov_b32 v{vOne}, 1")
    if k.nobar == 2: lds_spin(k, vCnt, CNT_QX, vt+2, sT2, sSp, 4)
    if k.nobar == 3: lds_spin(k, vCnt, CNT_RD0, vt+2, sT2, sSp, 4)
    dma_voff_128(g, vTsrc1, F*2, vt, vt+1)
    tr_addr_128(g, vTr1[0], vTr1[1], "nat", vt, vt+1, vt+2, sRing)
    g(f"v_add_u32 v{vD1}, {128*1024}, v{vL16}")
    g(f"v_add_u32 v{vWr}, s{sRing}, v{vL16}")
    g(f"s_lshl_b32 s{sT1}, s{sG}, 12"); g(f"s_add_u32 s{sT1}, s{sT1}, {L_RING}")
    g(f"v_add_u32 v{vRd}, s{sT1}, v{vL16}")
    g(f"s_and_b32 s{sT1}, s{sG}, 1"); g(f"s_lshl_b32 s{sT1}, s{sT1}, 1"); g(f"s_lshl_b32 s{sT2}, s{sDb}, 2")
    g(f"s_add_u32 s{sT1}, s{sT1}, s{sT2}")
    g(f"v_bfe_u32 v{vt}, v0, 4, 1")
    g(f"v_add_u32 v{vt}, s{sT1}, v{vt}")
    g(f"v_mul_u32_u24 v{vt+1}, 52, v{vt}")
    g(f"v_lshrrev_b32 v{vt+1}, 8, v{vt+1}")
    g(f"v_mul_u32_u24 v{vt+2}, 5, v{vt+1}")
    g(f"v_sub_u32 v{vt}, v{vt}, v{vt+2}")
    g(f"v_mul_u32_u24 v{vt+1}, 3, v{vt+1}")
    g(f"v_lshrrev_b32 v{vt+2}, 1, v{vt}")
    g(f"v_add_u32 v{vt+1}, v{vt+1}, v{vt+2}")
    g(f"v_mul_u32_u24 v{vt+1}, {96*1024}, v{vt+1}")
    g(f"v_and_b32 v{vt}, 1, v{vt}")
    g(f"v_lshlrev_b32 v{vt}, 4, v{vt}")
    g(f"v_and_b32 v{vt+2}, 15, v0")
    g(f"v_add_u32 v{vt}, v{vt}, v{vt+2}")
    g(f"v_and_b32 v{vt+2}, 32, v0")
    g(f"v_add_u32 v{vt}, v{vt}, v{vt+2}")
    g(f"v_lshl_add_u32 v{vGst}, v{vt}, 4, v{vt+1}")
    c1 = -2.0*math.sqrt(2/math.pi)*1.4426950408889634
    g(f"v_mov_b32 v{vC1}, {f32(c1)}"); g(f"v_mov_b32 v{vOnes}, 1.0")
    g(f"s_mov_b32 s{sC2}, {f32(c1*0.044715)}")
    dma_voff_128(g, vTsrc2, S_TOK*2, vt, vt+1)
    tr_addr_128(g, vTr2[0], vTr2[1], "perm", vt, vt+1, vt+2, sRing)
    g(f"v_add_u32 v{vD2[1]}, {96*1024}, v{vL16}")
    g(f"v_add_u32 v{vD2[2]}, {2*96*1024}, v{vL16}")
    g(f"v_bfe_u32 v{vt}, v0, 4, 1"); g(f"v_lshlrev_b32 v{vt}, 30, v{vt}")
    g(f"v_or_b32 v{vD2[2]}, v{vD2[2]}, v{vt}")
    g(f"v_lshlrev_b32 v{vt}, {FSH}, v0")
    g(f"v_add_u32 v{vt+1}, {72 << FSH}, v{vt}")
    g(f"v_cmp_le_u32 vcc, 24, v0"); g.nop(2)
    g(f"v_cndmask_b32 v{vGfl}, v{vt}, v{vt+1}, vcc")
    g(f"v_mov_b32 v{vt+1}, 0")
    g(f"v_cmp_le_u32 vcc, 48, v0"); g.nop(2)
    g(f"v_cndmask_b32 v{vGfl}, v{vGfl}, v{vt+1}, vcc")
    g(f"s_mul_i32 s{sT1}, s{sN}, 48"); g(f"s_lshl_b32 s{sT2}, s{sG}, 4"); g(f"s_add_u32 s{sT1}, s{sT1}, s{sT2}")
    g(f"v_lshrrev_b32 v{vt}, 2, v0"); g(f"v_add_u32 v{vt}, s{sT1}, v{vt}")
    g(f"v_lshlrev_b32 v{vt}, 12, v{vt}")
    g(f"v_and_b32 v{vt+1}, 3, v0"); g(f"v_lshl_add_u32 v{vW2p}, v{vt+1}, 7, v{vt}")
    for u in range(5):
        g(f"v_add_u32 v{vt}, {64*u}, v0")
        div10(g, vt+1, vt+2, vt)
        g(f"v_lshlrev_b32 v{vWsrc[u]}, 4, v{vt+2}")
        g(f"v_mul_u32_u24 v{vt+1}, 1280, v{vt+1}")
        g(f"v_add_u32 v{vWsrc[u]}, v{vWsrc[u]}, v{vt+1}")
    g(f"v_lshrrev_b32 v{vt}, 5, v0"); g(f"v_lshlrev_b32 v{vt}, 3, v{vt}")
    g(f"v_bfe_u32 v{vt+1}, v0, 2, 2"); g(f"v_add_u32 v{vt}, v{vt}, v{vt+1}")
    g(f"v_mul_u32_u24 v{vWtr}, 160, v{vt}")
    g(f"v_bfe_u32 v{vt+1}, v0, 4, 1"); g(f"v_lshl_add_u32 v{vWtr}, v{vt+1}, 5, v{vWtr}")
    g(f"v_and_b32 v{vt+1}, 3, v0"); g(f"v_lshl_add_u32 v{vWtr}, v{vt+1}, 3, v{vWtr}")
    g(f"v_add_u32 v{vWtr}, s{sRing}, v{vWtr}")
    g(f"v_add_u32 v{vO1}, 40960, v{vL16}")
    g(f"v_and_b32 v{vt}, 31, v0"); g(f"v_mul_u32_u24 v{vXo}, 1280, v{vt}")
    g(f"v_lshrrev_b32 v{vt+1}, 5, v0"); g(f"v_lshl_add_u32 v{vXo}, v{vt+1}, 3, v{vXo}")
    g(f"s_lshl_b32 s{sT0}, s{sI}, 1"); g(f"s_lshr_b32 s{sT1}, s{sG}, 1"); g(f"s_add_u32 s{sT0}, s{sT0}, s{sT1}")
    g(f"s_lshl_b32 s{sCnt}, s{sT0}, 6")
    g(f"s_mul_i32 s{sXo}, s{sT0}, {32*1280}")
    g(f"s_mul_i32 s{sT0}, s{sJ}, 160"); g(f"s_add_u32 s{sXo}, s{sXo}, s{sT0}")
    g(f"s_and_b32 s{sT1}, s{sG}, 1"); g(f"s_mul_i32 s{sT1}, s{sT1}, 80"); g(f"s_add_u32 s{sXo}, s{sXo}, s{sT1}")
    g(f"s_mul_i32 s{sWo}, s{sG}, {160*1280}"); g(f"s_add_u32 s{sWo}, s{sWo}, s{sT0}")
    g("s_waitcnt lgkmcnt(0)")
    srd(g, sWa, sP3+2, sP3+3, S_TOK*D*2)
    for kk in range(5):
        g(f"buffer_load_dwordx2 {V(vXr+2*kk,2)}, v{vXo}, {S(sWa,4)}, s{sXo} offen offset:{16*kk}")
    srd(g, sWb, sP2+2, sP2+3, S_TOK*2)
    g(f"v_and_b32 v{vt}, 31, v0"); g(f"v_lshlrev_b32 v{vt}, 1, v{vt}")
    g(f"buffer_load_ushort v{vB2}, v{vt}, {S(sWb,4)}, s{sCnt} offen")
    g(f"s_and_b32 s{sOut+1}, s{sOut+1}, 0xffff"); g(f"s_mov_b32 s{sOut+2}, {S_TOK*D*2}"); g(f"s_mov_b32 s{sOut+3}, 0x20000")
    vm = Alloc(common_end, 255, "v")
    TB = [vm(8,4), vm(8,4)]
    DR = vm(d1*8, 4); ACC = vm(64, 4); vB = vm(16, 4); vBr = vm(8, 2)
    nv1 = vm.p
    acc = lambda a, b: ACC + (2*a+b)*16
    g(f"s_mul_i32 s{sTso}, s{sG}, {512*F*2}"); g(f"s_lshl_b32 s{sT1}, s{sFa}, 7"); g(f"s_add_u32 s{sTso}, s{sTso}, s{sT1}")
    g(f"s_lshl_b32 s{sDso}, s{sDb}, 18"); g(f"s_lshl_b32 s{sT1}, s{sG}, 15")
    g(f"s_add_u32 s{sDso}, s{sDso}, s{sT1}"); g(f"s_add_u32 s{sDso}, s{sDso}, {WS_HF}")
    srd(g, sWa, sP, sP+1, S_TOK*F*2)
    srd(g, sWb, sP+2, sP+3, F*2)
    if k.nobar:
        lds_spin(k, vCnt, CNT_HT, vt+2, sT2, sSp, 1)
        lds_spin(k, vCnt, CNT_QX, vt+2, sT2, sSp, 4)
    g(f"s_cmp_ge_u32 s{sN}, 30")
    g("s_cbranch_scc1 L_m2")
    g(f"v_lshrrev_b32 v{vt}, 5, v0"); g(f"v_lshlrev_b32 v{vt}, 3, v{vt}")
    g(f"s_lshr_b32 s{sT1}, s{sG}, 1"); g(f"s_lshl_b32 s{sT1}, s{sT1}, 6"); g(f"s_lshl_b32 s{sT2}, s{sFa}, 7")
    g(f"s_add_u32 s{sT1}, s{sT1}, s{sT2}")
    for q in range(4):
        g(f"buffer_load_dwordx2 {V(vBr+2*q,2)}, v{vt}, {S(sWb,4)}, s{sT1} offen offset:{16*q}")
    if k.pack4:
        g(f"v_and_b32 v{vt}, 15, v0"); g(f"v_lshlrev_b32 v{vt}, {FSH}, v{vt}")
        g(f"s_lshl_b32 s{sT1}, s{sG}, {4+FSH}"); g(f"s_add_u32 s{sT1}, s{sT1}, {WS_HFL}")
        poll_flags(k, vt, f"s{sT1}", vt+4, 4, sSp, sleep=hsleep)
    else:
        g(f"v_lshlrev_b32 v{vt}, {FSH}, v0")
        g(f"s_lshl_b32 s{sT1}, s{sG}, {6+FSH}"); g(f"s_add_u32 s{sT1}, s{sT1}, {WS_HFL}")
        poll_flags(k, vt, f"s{sT1}", vt+1, 1, sSp, sleep=hsleep)
    st("hflags")
    for q in range(4):
        for kk in range(2):
            g(f"v_lshlrev_b32 v{vB+4*q+2*kk}, 16, v{vBr+2*q+kk}")
            g(f"v_and_b32 v{vB+4*q+2*kk+1}, 0xffff0000, v{vBr+2*q+kk}")
    if gate: lds_spin(k, vCnt, CNT_GATE if k.gate2 else CNT_RD0, vt+2, sT2, sSp, 4)
    stream_gemm(k, "m1", 32, d1, F*2, sWa, sTso, vTsrc1, sRing, vTr1, TB, "nat", sDso, [vL16, vD1], DR, 2, acc, True, sCnt)
    st("m1k")
    g(f"s_setprio {eprio}")
    srd(g, sWa, sP2, sP2+1, F*S_TOK*2)
    g(f"s_lshl_b32 s{sT1}, s{sXc}, 9")
    g(f"s_cmp_eq_u32 s{sG}, 3"); g("s_cbranch_scc1 L_m1_np")
    g(f"buffer_load_dword v255, v{vW2p}, {S(sWa,4)}, s{sT1} offen")
    g.label("L_m1_np")
    g.nop(12)
    for tt in range(4):
        if tt == 3: g("s_waitcnt lgkmcnt(8)")
        for q in range(4): g(f"ds_write_b128 v{vWr}, {V(ACC+16*tt+4*q,4)} offset:{tt*4096 + q*1024}")
    g("s_waitcnt lgkmcnt(0)")
    lds_signal(g, vCnt, vOne, CNT_M1A)
    lds_spin(k, vCnt, CNT_M1A, vt+2, sT2, sSp, 4)
    for s_ in range(4):
        if s_ == 3: g("s_waitcnt lgkmcnt(4)")
        for q in range(4): g(f"ds_read_b128 {V(ACC+16*s_+4*q,4)}, v{vRd} offset:{s_*RING + q*1024}")
    for r in range(0, 16, 2): g(pk("add", ACC+r, V(ACC+r,2), V(ACC+16+r,2)))
    g("s_waitcnt lgkmcnt(0)")
    lds_signal(g, vCnt, vOne, CNT_M1B)
    for r in range(0, 16, 2): g(pk("add", ACC+32+r, V(ACC+32+r,2), V(ACC+48+r,2)))
    for r in range(0, 16, 2): g(pk("add", ACC+r, V(ACC+r,2), V(ACC+32+r,2)))
    gelu16(g, ACC, vB, vt, sC2, vC1, vOnes)
    for kk in range(8): g(f"v_cvt_pk_bf16_f32 v{ACC+16+kk}, v{ACC+2*kk}, v{ACC+2*kk+1}")
    g(f"s_lshr_b32 s{sT1}, s{sG}, 1"); g(f"s_lshl_b32 s{sT1}, s{sT1}, 1"); g(f"s_lshl_b32 s{sT2}, s{sFa}, 2")
    g(f"s_add_u32 s{sT1}, s{sT1}, s{sT2}"); g(f"s_lshl_b32 s{sT1}, s{sT1}, 10"); g(f"s_add_u32 s{sT1}, s{sT1}, {WS_GF}")
    g(f"buffer_store_dwordx4 {V(ACC+16,4)}, v{vGst}, {S(sWS,4)}, s{sT1} offen sc1")
    g(f"buffer_store_dwordx4 {V(ACC+20,4)}, v{vGst}, {S(sWS,4)}, s{sT1} offen offset:1024 sc1")
    g(f"s_mul_i32 s{sT0}, s{sDb}, 24"); g(f"s_add_u32 s{sT0}, s{sT0}, s{sFa}"); g(f"s_lshl_b32 s{sT0}, s{sT0}, 2")
    g(f"s_add_u32 s{sT0}, s{sT0}, s{sG}"); g(f"s_lshl_b32 s{sT0}, s{sT0}, {FSH}"); g(f"s_add_u32 s{sT0}, s{sT0}, {WS_GFL}")
    g("s_waitcnt vmcnt(0)")
    write_flag(g, sT0, vt+1, vt+2)
    st("gflag")
    g(f"s_setprio {prio}")
    lds_spin(k, vCnt, CNT_M1B, vt+2, sT2, sSp, 4)
    if k.gskip == 2: g("s_branch L_gdone")
    g.label("L_m2")
    if k.gskip == 2: g("s_branch L_gdone")
    if k.stamps:
        while len(k.names["G"]) < 11: k.names["G"].append("_")
    vb = Alloc(common_end, 255, "v")
    TB = [vb(12,4), vb(12,4)]
    DEPTH = 6
    DR = vb(80, 4); ACC = vb(96, 4)
    nv2 = vb.p
    acc = lambda a, b: ACC + (3*a+b)*16
    srd(g, sWa, sP2, sP2+1, F*S_TOK*2)
    srd(g, sWb, sP3, sP3+1, D*D*2)
    g(f"s_mul_i32 s{sTso}, s{sG}, {384*S_TOK*2}"); g(f"s_lshl_b32 s{sT1}, s{sI}, 7"); g(f"s_add_u32 s{sTso}, s{sTso}, s{sT1}")
    g(f"s_mul_i32 s{sDso}, s{sJ}, {3*96*1024}"); g(f"s_mul_i32 s{sT1}, s{sG}, {24*1024}")
    g(f"s_add_u32 s{sDso}, s{sDso}, s{sT1}"); g(f"s_add_u32 s{sDso}, s{sDso}, {WS_GF}")
    g(f"s_mul_i32 s{sT1}, s{sN}, 200"); g(f"s_lshl_b32 s{sT2}, s{sG}, 6"); g(f"s_add_u32 s{sT1}, s{sT1}, s{sT2}")
    g(f"s_lshl_b32 s{sT1}, s{sT1}, 7")
    g(f"v_lshlrev_b32 v{vt}, 3, v{vL16}")
    g(f"s_cmp_eq_u32 s{sG}, 3"); g(f"s_cselect_b32 exec_lo, 0xff, -1"); g(f"s_cselect_b32 exec_hi, 0, -1")
    g(f"buffer_load_dword v255, v{vt}, {S(sWb,4)}, s{sT1} offen")
    g("s_mov_b64 exec, -1")
    g(f"s_mul_i32 s{sT1}, s{sJ}, 5"); g(f"s_lshr_b32 s{sT1}, s{sT1}, 2"); g(f"s_mul_i32 s{sT1}, s{sT1}, {96 << FSH}")
    g(f"s_mul_i32 s{sT2}, s{sG}, {24 << FSH}"); g(f"s_add_u32 s{sT1}, s{sT1}, s{sT2}"); g(f"s_add_u32 s{sT1}, s{sT1}, {WS_GFL}")
    poll_flags(k, vGfl, f"s{sT1}", vt+1, 1, sSp, sleep=gsleep)
    st("gflags")
    stream_gemm(k, "m2", 24, DEPTH, S_TOK*2, sWa, sTso, vTsrc2, sRing, vTr2, TB, "perm", sDso, vD2, DR, 3, acc, False, sCnt)
    st("m2k")
    g(f"s_setprio {e2prio}")
    sSt = [sFa, sDb, sFl, sCnt, sTso]
    sFlg = sP
    g(f"s_lshl_b32 s{sFlg}, s{sI}, {5+FSH}"); g(f"s_lshl_b32 s{sT2}, s{sG}, {3+FSH}"); g(f"s_add_u32 s{sFlg}, s{sFlg}, s{sT2}")
    g(f"s_add_u32 s{sFlg}, s{sFlg}, {WS_OFL}")
    g(f"v_and_b32 v{vt}, 7, v0"); g(f"v_lshlrev_b32 v{vt}, {FSH}, v{vt}")
    if k.wofast: g(f"buffer_load_dword v{vt+6}, v{vt}, {S(sWS,4)}, s{sFlg} offen sc1")
    g(f"s_mul_i32 s{sT0}, s{sJ}, 52"); g(f"s_lshr_b32 s{sT0}, s{sT0}, 8"); g(f"s_mul_i32 s{sT0}, s{sT0}, 5")
    g(f"s_sub_u32 s{sT0}, s{sJ}, s{sT0}")
    for s_ in range(5):
        g(f"s_mov_b32 s{sSt[s_]}, s{sT0}")
        g(f"s_add_u32 s{sT0}, s{sT0}, 1"); g(f"s_cmp_eq_u32 s{sT0}, 5"); g(f"s_cselect_b32 s{sT0}, 0, s{sT0}")
    def issue_wo(stage, slot):
        for u in range(5):
            g(f"s_add_u32 m0, s{sRing}, {slot*5120 + u*1024}")
            if u == 0:
                g(f"s_mul_i32 s{sT1}, s{sSt[stage]}, {32*1280}"); g(f"s_add_u32 s{sT1}, s{sT1}, s{sWo}")
            else: g("s_nop 0")
            g(f"buffer_load_dwordx4 v{vWsrc[u]}, {S(sWb,4)}, s{sT1} offen lds")
    for s_ in range(3): issue_wo(s_, s_)
    def residual():
        g(f"v_lshlrev_b32 v{vB2}, 16, v{vB2}")
        for kk in range(5):
            g(f"v_lshlrev_b32 v{RES+4*kk}, 16, v{vXr+2*kk}")
            g(f"v_and_b32 v{RES+4*kk+1}, 0xffff0000, v{vXr+2*kk}")
            g(f"v_lshlrev_b32 v{RES+4*kk+2}, 16, v{vXr+2*kk+1}")
            g(f"v_and_b32 v{RES+4*kk+3}, 0xffff0000, v{vXr+2*kk+1}")
        g(f"v_mov_b32 v{vt+4}, v{vB2}")
        for r in range(0, 20, 2): g(pk("add", RES+r, V(RES+r,2), V(vt+4,2), None, "[1,0]"))
    if not k.wofast: residual()
    g(f"s_mul_i32 s{sDso}, s{sI}, 81920"); g(f"s_mul_i32 s{sT0}, s{sG}, 10240")
    g(f"s_add_u32 s{sDso}, s{sDso}, s{sT0}"); g(f"s_add_u32 s{sDso}, s{sDso}, {WS_OF}")
    if k.wofast:
        g("s_waitcnt vmcnt(15)")
        g(f"v_cmp_ne_u32 vcc, s{sNon}, v{vt+6}")
        g.nop(5)
        g("s_cbranch_vccz L_o_ready")
    poll_flags(k, vt, f"s{sFlg}", vt+1, 1, sSp, sleep=osleep)
    g.label("L_o_ready")
    st("oflags")
    for s_ in range(5):
        g(f"s_lshl_b32 s{sT0}, s{sSt[s_]}, 11"); g(f"s_add_u32 s{sT0}, s{sT0}, s{sDso}")
        for m in range(2):
            for ss in range(2):
                kk = 2*s_ + m
                g(f"buffer_load_dwordx4 {V(DR+(2*kk+ss)*4,4)}, v{vL16 if ss==0 else vO1}, {S(sWS,4)}, s{sT0} offen offset:{m*1024} sc1")
    if k.wofast: residual()
    def wo_rd(kk, buf):
        stage = kk // 2; slot = stage % 3; m = kk % 2
        for a in range(3):
            for t in range(2):
                g(f"ds_read_b64_tr_b16 {V(TB[buf]+4*a+2*t,2)}, v{vWtr} offset:{slot*5120 + m*2560 + t*640 + a*64}")
    def wo_mf(kk, buf):
        for a in range(3):
            for ss in range(2):
                c = acc(ss, a)
                g(f"v_mfma_f32_32x32x16_bf16 {V(c,16)}, {V(TB[buf]+4*a,4)}, {V(DR+(2*kk+ss)*4,4)}, {V(c,16)}")
    vw = [16, 17, 18, 5, 0]
    g(f"s_waitcnt vmcnt({vw[0]})")
    wo_rd(0, 0)
    for kk in range(10):
        stage = kk // 2
        if kk < 9:
            if (kk+1) % 2 == 0:
                g("s_waitcnt lgkmcnt(0)")
                wo_mf(kk, kk % 2)
                if stage < 2: issue_wo(stage+3, stage % 3)
                g(f"s_waitcnt vmcnt({vw[stage+1]})")
                wo_rd(kk+1, (kk+1) % 2)
            else:
                wo_rd(kk+1, (kk+1) % 2)
                g("s_waitcnt lgkmcnt(6)")
                wo_mf(kk, kk % 2)
        else:
            g("s_waitcnt lgkmcnt(0)")
            wo_mf(kk, kk % 2)
    st("wok")
    def quad(Q):
        ss = Q // 10; qq = Q % 10
        return acc(ss, qq // 4) + 4*(qq % 4)
    g.nop(12)
    for o in range(4):
        g(f"s_cmp_eq_u32 s{sG}, {o}"); g(f"s_cbranch_scc1 L_fin_w{o}")
        g(f"s_sub_u32 s{sT1}, {o+3}, s{sG}"); g(f"s_and_b32 s{sT1}, s{sT1}, 3"); g(f"s_mul_i32 s{sT1}, s{sT1}, 5120")
        g(f"v_add_u32 v{vt+1}, s{sT1}, v{vWr}")
        for kk in range(5): g(f"ds_write_b128 v{vt+1}, {V(quad(5*o+kk),4)} offset:{kk*1024}")
        g.label(f"L_fin_w{o}")
    g("s_waitcnt lgkmcnt(0)")
    lds_signal(g, vCnt, vOne, CNT_FA)
    for o in range(4):
        g(f"s_cmp_lg_u32 s{sG}, {o}"); g(f"s_cbranch_scc1 L_fin_mv{o}")
        for kk in range(5):
            for r in (0, 2): g(pk("add", RES+4*kk+r, V(RES+4*kk+r,2), V(quad(5*o+kk)+r,2)))
        g.label(f"L_fin_mv{o}")
    lds_spin(k, vCnt, CNT_FA, vt+2, sT2, sSp, 4)
    P = DR
    for k3 in range(1, 4):
        g(f"s_add_u32 s{sT1}, s{sG}, {k3}"); g(f"s_and_b32 s{sT1}, s{sT1}, 3")
        g(f"s_mul_i32 s{sT2}, s{sT1}, {RING}"); g(f"s_add_u32 s{sT2}, s{sT2}, {L_RING + ((-k3-1+4) & 3)*5120}")
        g(f"v_add_u32 v{vt+1}, s{sT2}, v{vL16}")
        for kk in range(5): g(f"ds_read_b128 {V(P+20*(k3-1)+4*kk,4)}, v{vt+1} offset:{kk*1024}")
    for k3 in range(3):
        g(f"s_waitcnt lgkmcnt({10-5*k3})")
        for r in range(0, 20, 2): g(pk("add", RES+r, V(RES+r,2), V(P+20*k3+r,2)))
    for kk in range(5):
        g(f"v_cvt_pk_bf16_f32 v{P+2*kk}, v{RES+4*kk}, v{RES+4*kk+1}")
        g(f"v_cvt_pk_bf16_f32 v{P+2*kk+1}, v{RES+4*kk+2}, v{RES+4*kk+3}")
        g(f"buffer_store_dwordx2 {V(P+2*kk,2)}, v{vXo}, {S(sOut,4)}, s{sXo} offen offset:{16*kk}{k.outmod}")
    g.label("L_gdone")
    if k.stamps:
        for r in ("G1", "G2"): k.names[r] = k.names[r][:8] + k.names["G"][8:]
    k.dump("G", sT0, vt, vt+1)
    if k.stamps:
        for r in ("G1", "G2"): k.names[r] = k.names[r][:8] + k.names["G"][8:]
    print("gemm vgprs", nv1, vb.p)
    return max(nv1, vb.p)

NAME = "parallel_sum__grouped_kv_mqa__mixer_token_mlp__prompt_kernel"
def gen_fused(stamps=False, name=NAME, prio=0, gate=1, xrot=0, niter=8, hprobe=0, gprobe=0, w1probe=1, wqdelay=2, xprobe=0, wqprobe=0, eprio=0, e2prio=0, pos=4, xdiag=0, osleep=1, gsleep=1, remap=1, kvrot=0, krot=0, qpat=1, gpoll=1, spinsleep=0, gskip=0, d1=8, ksleep=2, hsleep=2, outm=0, kvprio=0, prog=1, nobar=0, pack4=1, hprio=0, hwait=4, kvfirst=1, hbar=0, kvself=0, early=0, exp_nodma=0, gate2=0, stage=0, hx0=0, kvpd=1, dprio=0, aprio=0, kvprobe=0, xrot2=0, kvdiag=0, near=1, lay=1, dfirst=1, small=0, wofast=0, estart=0):
    k = K(stamps); g = k.g; k.xdiag = xdiag; k.gpoll = gpoll; k.gsleep2 = spinsleep; k.spinsleep = 0; k.gskip = gskip; k.kvprio = kvprio; k.nobar = nobar; k.pack4 = pack4; k.kvfirst = kvfirst; k.early = early; k.estart = estart; k.wofast = wofast; k.small = small; k.dfirst = dfirst; k.lay = lay; k.near = near; k.kvdiag = kvdiag; k.xrot2 = xrot2; k.kvprobe = kvprobe; k.dprio = dprio; k.aprio = aprio; k.hx0 = hx0; k.kvpd = kvpd; k.stage = stage; k.gate2 = gate2; k.exp_nodma = exp_nodma; k.kvself = kvself; k.hprio = hprio; k.hwait = hwait; k.hbar = hbar; k.outmod = ['', ' sc1', ' nt', ' sc0 sc1', ' sc1 nt'][outm]
    g.raw(kernel_header(name))
    g("s_cmp_ge_u32 s2, 256"); g("s_cbranch_scc1 L_end")
    k.stamp("A", "rstart", real=True); k.stamp("A", "start")
    g(f"s_load_dwordx2 {S(sPtr,2)}, s[0:1], {KA_WS}")
    g(f"s_load_dwordx8 {S(sKA,8)}, s[0:1], {KA_X}")
    g(f"s_load_dwordx2 {S(sKA+8,2)}, s[0:1], {KA_W1}")
    g("v_lshrrev_b32 v1, 6, v0"); g("v_and_b32 v0, 63, v0")
    g(f"v_readfirstlane_b32 s{sW}, v1")
    g("v_mov_b32 v1, 0"); g("v_lshlrev_b32 v2, 2, v0"); g(f"v_add_u32 v2, {L_CNT}, v2")
    g(f"s_cmp_lg_u32 s{sW}, 7"); g("s_cbranch_scc1 L_nz")
    g("s_mov_b64 exec, 0xffff"); g("ds_write_b32 v2, v1"); g("s_mov_b64 exec, -1")
    g.label("L_nz")
    g(f"s_and_b32 s{sXc}, s2, 7"); g(f"s_lshr_b32 s{sN}, s2, 3")
    if remap:
        g(f"s_lshl_b32 s{sI}, s{sXc}, 2"); g(f"s_lshr_b32 s{sJ}, s{sN}, 3"); g(f"s_add_u32 s{sI}, s{sI}, s{sJ}")
        g(f"s_and_b32 s{sJ}, s{sN}, 7")
    else:
        g(f"s_lshl_b32 s{sI}, s{sXc}, 2"); g(f"s_and_b32 s{sJ}, s{sN}, 3"); g(f"s_add_u32 s{sI}, s{sI}, s{sJ}")
        g(f"s_lshr_b32 s{sJ}, s{sN}, 2")
    phase_p(k, xrot, w1probe, wqdelay, xprobe, wqprobe, qpat, ksleep, prog)
    nva = attention(k, niter, pos, kvrot)
    if k.lay: g.L += k.deferred
    g.raw(".p2align 6")
    nvg = gemm_waves(k, prio, gate, eprio, e2prio, osleep, gsleep, d1, hsleep)
    g.label("L_end")
    g("s_endpgm")
    return k, g.text(), kernel_desc(name, 256), LDS_TOTAL

HEADER = open("header.txt").read() if __import__("os").path.exists("header.txt") else ""
OVERVIEW = """; One persistent launch, 256 workgroups (one per CU, 8 waves).  Workgroup (i, j): 64 tokens (tile i), 4 heads / 80 columns (group j).
;            the softmax denominator.  K/V stream through a two-chunk LDS ring.  The max-subtraction is skipped only when the
"""
def build_file(path, stamps=False, **kw):
    from build import HEADER
    k, text, desc, lds = gen_fused(stamps, **kw)
    out = HEADER + f"; @launch grid=(256,1,1) block=(512,1,1) lds={lds}\n" + '.amdgcn_target "amdgcn-amd-amdhsa--gfx950"\n' + OVERVIEW + text + desc
    open(path, "w").write(out)
    return k
if __name__ == "__main__":
    import sys, hazard
    k = build_file("f.s", stamps=False)
    hazard.check(open("f.s").read())
    k = build_file("fs.s", stamps=True)
    print(k.names)
```
